```python
import torch

def _softmax(x, axis=-1):
    return torch.softmax(x, dim=axis)
def _gelu(x):
    return torch.nn.functional.gelu(x, approximate="tanh")
def _silu(x):
    return torch.nn.functional.silu(x)
def _sigmoid(x):
    return torch.sigmoid(x)
def _layernorm(x, axis=-1, eps=1e-5):
    m = x.mean(dim=axis, keepdim=True)
    v = x.var(dim=axis, keepdim=True, unbiased=False)
    return (x - m) / torch.sqrt(v + eps)
def _scatter_add(tgt, idx, src, axis=0):
    return tgt.clone().index_add_(axis, idx, src)
def _segment_sum(src, seg, n):
    out = torch.zeros((n,) + src.shape[1:], dtype=src.dtype)
    return out.index_add_(0, seg, src)
def _pad(x, pw):
    flat = tuple(v for pair in reversed(pw) for v in pair)
    return torch.nn.functional.pad(x, flat)

kernel_name = 'parallel_sum__compressed_kv_cla__glu_gated_glu__decode'

def setup_inputs():

    _w = (lambda a: (lambda t: t.to(torch.bfloat16) if t.is_floating_point() else t)(torch.as_tensor(a)))
    def _A_setup():
        B, H, Sq, Sk, D, M = 2, 32, 1, 4096, 128, 512
        Dc = 4 * D
        return {
            "x": _w((lambda *s: torch.randn(*s, dtype=torch.bfloat16) * 0.05)(B, Sq, M)),
            "c_kv": _w((lambda *s: torch.randn(*s, dtype=torch.bfloat16) * 1.6)(B, Sk, Dc)),
            "w_q": _w((lambda *s: torch.randn(*s, dtype=torch.bfloat16) * 1.6)(M, H, D) * (M ** -0.5)),
            "w_uk": _w((lambda *s: torch.randn(*s, dtype=torch.bfloat16) * 1.6)(Dc, H, D) * (Dc ** -0.5)),
            "w_uv": _w((lambda *s: torch.randn(*s, dtype=torch.bfloat16) * 1.6)(Dc, H, D) * (Dc ** -0.5)),
            "w_o": _w((lambda *s: torch.randn(*s, dtype=torch.bfloat16) * 1.6)(H, D, M) * ((H * D) ** -0.5)),
        }
    _A_in = _A_setup()

    def _B_setup():
        B, S, D, F = 2, 1, 512, 1376
        return {
            "x": _w((lambda *s: torch.randn(*s, dtype=torch.bfloat16) * 0.05)(B, S, D)),
            "w_gate": _w((lambda *s: torch.randn(*s, dtype=torch.bfloat16) * 0.1)(D, F)),
            "w_up": _w((lambda *s: torch.randn(*s, dtype=torch.bfloat16) * 0.05)(D, F)),
            "w_down": _w((lambda *s: torch.randn(*s, dtype=torch.bfloat16) * 0.05)(F, D)),
        }
    _B_in = _B_setup()

    return {
        "A_x": _A_in["x"],
        "A_c_kv": _A_in["c_kv"],
        "A_w_q": _A_in["w_q"],
        "A_w_uk": _A_in["w_uk"],
        "A_w_uv": _A_in["w_uv"],
        "A_w_o": _A_in["w_o"],
        "B_x": _B_in["x"],
        "B_w_gate": _B_in["w_gate"],
        "B_w_up": _B_in["w_up"],
        "B_w_down": _B_in["w_down"],
    }

def reference(A_x, A_c_kv, A_w_q, A_w_uk, A_w_uv, A_w_o, B_x, B_w_gate, B_w_up, B_w_down):
    def _A_ref(x, c_kv, w_q, w_uk, w_uv, w_o):
        B, Sq, M = x.shape[0], x.shape[1], x.shape[2]
        Sk = c_kv.shape[1]
        H, D = w_q.shape[1], w_q.shape[2]
        q = torch.einsum("bqm,mhd->bhqd", x, w_q)
        k = torch.einsum("bkc,chd->bhkd", c_kv, w_uk)
        v = torch.einsum("bkc,chd->bhkd", c_kv, w_uv)
        scores = torch.einsum("bhqd,bhkd->bhqk", q, k) * (D ** -0.5)
        off = Sk - Sq
        qi = torch.arange(Sq)[:, None]
        kj = torch.arange(Sk)[None, :]
        cmask = kj <= (qi + off)
        scores = torch.where(cmask[None, None], scores, -1e9)
        p = _softmax(scores, axis=-1)
        ctx = torch.einsum("bhqk,bhkd->bhqd", p, v)
        return torch.einsum("bhqd,hdm->bqm", ctx, w_o)

    def _B_ref(x, w_gate, w_up, w_down):
        g = torch.einsum("bsd,df->bsf", x, w_gate)
        u = torch.einsum("bsd,df->bsf", x, w_up)
        h = _sigmoid(g) * u
        return torch.einsum("bsf,fd->bsd", h, w_down)

    x = A_x
    xn = _layernorm(x, axis=-1)
    return x + _A_ref(xn, A_c_kv, A_w_q, A_w_uk, A_w_uv, A_w_o) + _B_ref(xn, B_w_gate, B_w_up, B_w_down)
```

```python
import re

def _regs(tok):
    tok = tok.strip()
    neg = tok.lstrip('-')
    m = re.fullmatch(r'(?:abs\()?\|?([vsa])\[(\d+):(\d+)\]\|?\)?', neg)
    if m:
        return m.group(1), set(range(int(m.group(2)), int(m.group(3)) + 1))
    m = re.fullmatch(r'(?:abs\()?\|?([vsa])(\d+)\|?\)?', neg)
    if m:
        return m.group(1), {int(m.group(2))}
    if neg in ('vcc',):
        return 's', {106, 107}
    if neg == 'vcc_lo': return 's', {106}
    if neg == 'vcc_hi': return 's', {107}
    if neg == 'exec': return 's', {126, 127}
    if neg == 'm0': return 's', {124}
    return None, set()

TRANS = ('v_exp_f32', 'v_log_f32', 'v_rcp_f32', 'v_rsq_f32', 'v_sqrt_f32', 'v_sin_f32', 'v_cos_f32')

class Ins:
    __slots__ = ('text', 'op', 'kind', 'vw', 'vr', 'sw', 'sr', 'states', 'dpp', 'srcC', 'srcAB', 'wide_store', 'lds_dma', 'passes')

def parse(text):
    t = text.split(';')[0].strip()
    parts = t.split(None, 1)
    op = parts[0]
    rest = parts[1] if len(parts) > 1 else ''
    ops = []
    depth = 0; cur = ''
    for ch in rest:
        if ch == '[' or ch == '(': depth += 1
        if ch == ']' or ch == ')': depth -= 1
        if ch == ',' and depth == 0:
            ops.append(cur.strip()); cur = ''
        else:
            cur += ch
    if cur.strip(): ops.append(cur.strip())
    mods = ''
    if ops:
        last = ops[-1].split(None, 1)
        ops[-1] = last[0]
        mods = last[1] if len(last) > 1 else ''
    I = Ins(); I.text = text; I.op = op
    I.vw = set(); I.vr = set(); I.sw = set(); I.sr = set(); I.states = 1
    I.dpp = ('_dpp' in op); I.srcC = set(); I.srcAB = set(); I.wide_store = False; I.lds_dma = False; I.passes = 0
    def rd(tok):
        k, s = _regs(tok)
        if k == 'v': I.vr |= s
        elif k == 's': I.sr |= s
    def wr(tok):
        k, s = _regs(tok)
        if k == 'v': I.vw |= s
        elif k == 's': I.sw |= s
    base = re.sub(r'_(e32|e64|dpp|sdwa)$', '', op)
    if op.startswith('v_mfma'):
        I.kind = 'mfma'
        I.passes = 8 if '32x32' in op else 4
        wr(ops[0]); rd(ops[1]); rd(ops[2]); rd(ops[3])
        I.srcAB = _regs(ops[1])[1] | _regs(ops[2])[1]
        k, s = _regs(ops[3])
        I.srcC = s if k == 'v' else set()
    elif op.startswith('v_'):
        I.kind = 'valu'
        if base in TRANS: I.kind = 'trans'
        if base.startswith('v_dot2'): I.kind = 'dot'
        if base.startswith('v_permlane'):
            I.kind = 'permlane'
            wr(ops[0]); wr(ops[1]); rd(ops[0]); rd(ops[1])
        elif base.startswith('v_cmp'):
            wr(ops[0])
            for o in ops[1:]: rd(o)
        elif base in ('v_readfirstlane_b32', 'v_readlane_b32'):
            I.kind = 'readlane'
            wr(ops[0])
            for o in ops[1:]: rd(o)
        elif base in ('v_add_co_u32', 'v_addc_co_u32', 'v_sub_co_u32'):
            wr(ops[0]); wr(ops[1])
            for o in ops[2:]: rd(o)
        else:
            wr(ops[0])
            for o in ops[1:]: rd(o)
            if base in ('v_fmac_f32', 'v_dot2c_f32_bf16') or I.dpp: rd(ops[0])
    elif op.startswith('buffer_') or op.startswith('global_'):
        I.kind = 'vmem'
        if ' lds' in (' ' + mods) or 'load_lds' in op:
            I.lds_dma = True
            for o in ops: rd(o)
            I.sr.add(124)
        elif 'load' in op:
            wr(ops[0])
            for o in ops[1:]: rd(o)
        else:
            for o in ops: rd(o)
            if 'x4' in op or 'x3' in op:
                I.wide_store = True
                dt = ops[0] if op.startswith('buffer_') else ops[1]
                I.srcAB = _regs(dt)[1]
    elif op.startswith('ds_'):
        I.kind = 'ds'
        if 'read' in op or 'permute' in op or 'swizzle' in op:
            wr(ops[0])
            for o in ops[1:]: rd(o)
        else:
            for o in ops: rd(o)
    elif op == 's_nop':
        I.kind = 'nop'; I.states = int(ops[0], 0) + 1
    elif op.startswith('s_'):
        I.kind = 'salu'
        if op.startswith('s_cmp') or op.startswith('s_bitcmp') or op.startswith('s_cbranch') or op in ('s_branch', 's_barrier', 's_waitcnt', 's_endpgm', 's_setprio', 's_sleep'):
            for o in ops: rd(o)
        else:
            if ops: wr(ops[0])
            for o in ops[1:]: rd(o)
            if 'saveexec' in op: I.sw |= {126, 127}
    else:
        raise ValueError(text)
    return I

VALUK = ('valu', 'trans', 'dot', 'permlane', 'readlane')

def need(p, c):
    n = 0
    pv = p.kind in VALUK
    cv = c.kind in VALUK
    if pv:
        if c.kind == 'mfma' and (p.vw & c.vr): n = max(n, 3 if p.kind == 'dot' else 2)
        if cv and c.dpp and (p.vw & c.vr): n = max(n, 2)
        if c.kind == 'readlane' and (p.vw & c.vr): n = max(n, 1)
        if c.kind == 'permlane' and (p.vw & c.vr): n = max(n, 2)
        if p.kind == 'trans' and cv and (p.vw & c.vr): n = max(n, 1)
        if p.kind == 'trans' and c.kind in ('vmem', 'ds') and (p.vw & c.vr): n = max(n, 1)
        if p.kind == 'dot' and ((p.vw & c.vr) or (p.vw & c.vw)):
            if c.op == p.op and not (p.vw & (c.vr - c.vw)):
                pass
            else:
                n = max(n, 3)
        if p.sw:
            if c.kind == 'vmem' and (p.sw & c.sr): n = max(n, 5)
            if cv and (p.sw & c.sr): n = max(n, 4 if c.kind == 'readlane' else 2)
            if c.kind == 'mfma' and (p.sw & {126, 127}): n = max(n, 4)
        if '_sdwa' in p.op and cv and (p.vw & (c.vr | c.vw)): n = max(n, 1)
    if p.kind == 'mfma':
        big = {4: 8, 8: 12}[p.passes]
        if c.kind == 'mfma':
            if p.vw & c.srcAB: n = max(n, big)
            if p.vw & c.srcC:
                if not (p.vw == c.srcC and p.passes == c.passes): n = max(n, {4: 6, 8: 10}[p.passes])
            if (p.vw & c.vw) and not (p.vw == c.srcC): n = max(n, big)
        elif cv or c.kind in ('vmem', 'ds'):
            if p.vw & (c.vr | c.vw): n = max(n, big)
            if cv and (p.srcC & c.vw): n = max(n, {4: 3, 8: 7}[p.passes])
    if p.kind == 'salu' and 124 in p.sw and c.lds_dma: n = max(n, 1)
    if p.wide_store and (p.srcAB & c.vw): n = max(n, 2)
    return n

class Asm:
    def __init__(self):
        self.out = []
        self.hist = []
        self.nnops = 0
    def raw(self, s):
        self.out.append(s)
    def L(self, name):
        self.out.append(name + ':')
    def C(self, s):
        self.out.append('    ; ' + s)
    def I(self, text):
        for line in text.split('\n'):
            line = line.strip()
            if not line: continue
            if line.endswith(':'):
                self.out.append(line); continue
            c = parse(line)
            dist = 0; req = 0
            for p in reversed(self.hist):
                r = need(p, c) - dist
                if r > req: req = r
                dist += p.states
                if dist > 24: break
            if req > 0:
                nop = parse(f's_nop {req - 1}')
                self.hist.append(nop); self.out.append('    ' + nop.text); self.nnops += 1
            self.hist.append(c)
            if len(self.hist) > 40: self.hist = self.hist[-40:]
            self.out.append('    ' + line)
    def text(self):
        return '\n'.join(self.out) + '\n'
```

```python
import sys, struct, math
from asmlib import Asm

KNAME = "parallel_sum__compressed_kv_cla__glu_gated_glu__decode_kernel"
O_EP, O_H1, O_HG, O_H2, O_ST, O_H5, O_H3, O_H1B, O_TS = 0, 0x10000, 0x50000, 0x80000, 0xA0000, 0xC0000, 0x100000, 0x300000, 0x400000
WSSZ = 0x800000
GUSZ = 512 * 1376 * 2
CKS = 1056
L_CK, L_QL, L_PB, L_MX, L_BEND = 0, 135168, 152064, 156160, 156672
L_UV, L_WO, L_DN, L_QB, L_CF, L_CC, L_CX, L_HB = 0, 65536, 131072, 147456, 148096, 148480, 150784, 151424
LDS_BYTES = 156672
SPIN = 20000

def f32(x): return "0x%08x" % struct.unpack("<I", struct.pack("<f", x))[0]
def vr(a, n=4): return f"v[{a}:{a+n-1}]"

DEF = dict(prof=0, ln_mimic=1, score_mimic=0, nt="nt", pf=1, h1fast=1, h1late=0, clean=1, g1=1, h2touch=0, fastn=12)

def gen(**kw):
    o = dict(DEF); o.update(kw)
    prof, nt = o['prof'], o['nt']
    A = Asm(); I = A.I; L = A.L; C = A.C
    def TS(k):
        if prof: I(f"s_memrealtime s[{64+2*k}:{65+2*k}]")
    def exec_set(lo, hi):
        I(f"s_mov_b32 exec_lo, {lo:#x}\ns_mov_b32 exec_hi, {hi:#x}")
    def exec_all(): I("s_mov_b64 exec, -1")
    def swap_red(op, v, t, which):
        I(f"v_mov_b32 v{t}, v{v}\nv_permlane{which}_swap_b32 v{v}, v{t}\n{op} v{v}, v{v}, v{t}")
    def dpp(op, v, ctl): I(f"{op}_dpp v{v}, v{v}, v{v} {ctl} row_mask:0xf bank_mask:0xf")
    def mfma(d, a, b, first): I(f"v_mfma_f32_16x16x32_bf16 {vr(d)}, {vr(a)}, {vr(b)}, {'0' if first else vr(d)}")
    WS, SX, SW, SK, SV = "s[44:47]", "s[48:51]", "s[52:55]", "s[56:59]", "s[60:63]"
    TS(0)
    I("s_load_dwordx16 s[16:31], s[0:1], 0\ns_load_dwordx8 s[32:39], s[0:1], 64\ns_load_dwordx2 s[40:41], s[0:1], 96")
    I("s_cmp_ge_u32 s2, 256\ns_cbranch_scc1 L_end")
    I("v_lshrrev_b32 v4, 6, v0\nv_and_b32 v1, 63, v0\nv_readfirstlane_b32 s3, v4\nv_lshrrev_b32 v2, 4, v1\nv_and_b32 v3, 15, v1")
    if o['pf']:
        I("s_cmp_lg_u32 s3, 7\ns_cbranch_scc1 L_nopf\ns_getpc_b64 s[6:7]")
        L("L_pc")
        I("v_lshlrev_b32 v4, 7, v1\nv_min_u32 v5, L_end-L_pc, v4\nglobal_load_dword v238, v5, s[6:7]\nv_add_u32 v4, 0x2000, v4\nv_min_u32 v5, L_end-L_pc, v4\nglobal_load_dword v239, v5, s[6:7]")
        L("L_nopf")
    I(f"s_mov_b32 s46, {WSSZ:#x}\ns_mov_b32 s47, 0x20000\ns_mov_b32 s50, 2048\ns_mov_b32 s51, 0x20000\ns_mov_b32 s55, 0x20000\ns_mov_b32 s59, 0x20000\ns_mov_b32 s63, 0x20000")
    if prof:
        for k in range(1, 16): I(f"s_mov_b32 s{64+2*k}, 0")
    I("s_and_b32 s4, s2, 7\ns_lshr_b32 s5, s2, 3")
    I("s_cmp_ge_u32 s2, 128\ns_cbranch_scc1 L_B")

    C("H role: head, quarter")
    I("s_lshl_b32 s6, s4, 2\ns_lshr_b32 s15, s5, 2\ns_add_u32 s6, s6, s15\ns_and_b32 s7, s5, 3\ns_lshr_b32 s8, s7, 1\ns_and_b32 s9, s7, 1")
    I("s_cmp_lt_u32 s3, 2\ns_cbranch_scc0 L_Hg")
    I(f"""s_lshl_b32 s12, s7, 1
s_add_u32 s12, s12, s3
s_lshl_b32 s13, s6, 3
s_add_u32 s13, s13, s12
s_lshl_b32 s13, s13, 10
s_add_u32 s13, s13, {O_H1B:#x}
s_lshl_b32 s12, s12, 6
s_mov_b32 s10, 8192
s_lshl_b32 s11, s12, 13
s_lshl_b32 s15, s6, 8
s_add_u32 s11, s11, s15
s_mov_b32 s54, 0x400000
s_mov_b32 s14, 0
s_waitcnt lgkmcnt(0)
s_mov_b64 s[52:53], s[20:21]
s_branch L_Hp""")
    L("L_Hg")
    I(f"""s_cmp_eq_u32 s3, 3
s_cselect_b32 s14, 128, 0
s_add_u32 s14, s14, s2
s_lshl_b32 s13, s14, 10
s_add_u32 s13, s13, {O_HG:#x}
s_cmp_ge_u32 s14, 88
s_cselect_b32 s15, 88, 0
s_sub_u32 s15, s14, s15
s_and_b32 s12, s15, 7
s_lshl_b32 s12, s12, 6
s_mov_b32 s10, 2752
s_mul_i32 s11, s12, 2752
s_lshr_b32 s15, s15, 3
s_lshl_b32 s15, s15, 8
s_add_u32 s11, s11, s15
s_mov_b32 s54, {GUSZ}
s_waitcnt lgkmcnt(0)
s_cmp_ge_u32 s14, 88
s_cselect_b64 s[52:53], s[32:33], s[30:31]""")
    if not o['g1']: I("s_mov_b32 s14, 200")
    L("L_Hp")
    I("s_mov_b64 s[44:45], s[40:41]\ns_mov_b64 s[48:49], s[16:17]\ns_mov_b64 s[56:57], s[22:23]\ns_mov_b32 s58, 0x400000\ns_mov_b64 s[60:61], s[24:25]\ns_mov_b32 s62, 0x400000")
    I(f"s_load_dword s42, s[40:41], {O_EP}")
    TS(1)
    XS, XC, WR, UK = 8, 16, 24, 88
    I(f"""v_lshrrev_b32 v8, 3, v3
v_lshlrev_b32 v8, 10, v8
v_lshl_add_u32 v5, v2, 5, v8
v_and_b32 v9, 7, v1
v_lshl_add_u32 v9, v2, 3, v9
v_lshl_add_u32 v4, v9, 4, v8
s_lshl_b32 s15, s10, 4
v_mul_lo_u32 v6, v2, s15
v_lshl_add_u32 v6, v3, 4, v6""")
    I("s_cmp_lt_u32 s3, 2\ns_cbranch_scc1 L_Hld\ns_barrier\ns_cmp_ge_u32 s3, 4\ns_cbranch_scc1 L_Huk\ns_cmp_ge_u32 s14, 176\ns_cbranch_scc1 L_Huk")
    L("L_Hld")
    I(f"s_lshl_b32 s15, s12, 1")
    I(f"buffer_load_dwordx4 {vr(XS)}, v4, {SX}, 0 offen\nbuffer_load_dwordx4 {vr(XS+4)}, v4, {SX}, 0 offen offset:512")
    I(f"buffer_load_dwordx4 {vr(XC)}, v5, {SX}, s15 offen\nbuffer_load_dwordx4 {vr(XC+4)}, v5, {SX}, s15 offen offset:16")
    for n in range(16):
        I(f"buffer_load_dwordx4 {vr(WR+4*n)}, v6, {SW}, s11 offen {nt}")
        if n < 15: I("s_add_u32 s11, s11, s10")
    I("s_cmp_ge_u32 s3, 2\ns_cbranch_scc1 L_Huk\ns_barrier")
    L("L_Huk")
    C("w_uk rows 128j+16w.. -> LDS (own UV slice)")
    I(f"""v_xor_b32 v7, v3, v2
v_lshlrev_b32 v7, 4, v7
v_lshl_add_u32 v7, v2, 13, v7
s_lshl_b32 s15, s7, 3
s_add_u32 s15, s15, s3
s_lshl_b32 s15, s15, 17
s_lshl_b32 s11, s6, 8
s_add_u32 s15, s15, s11
s_lshl_b32 s11, s3, 13""")
    for n in range(4):
        I(f"s_mov_b32 m0, s11\ns_add_u32 s11, s11, 1024\nbuffer_load_dwordx4 v7, {SK}, s15 offen {nt} lds\ns_add_u32 s15, s15, 0x8000")
        if n < 3: I(f"v_xor_b32 v7, {64*(n ^ (n+1))}, v7")
    I("s_waitcnt lgkmcnt(0)\ns_add_u32 s42, s42, 1\ns_and_b32 s43, s42, 0xff")
    I("s_cmp_ge_u32 s3, 4\ns_cbranch_scc1 L_Hpoll1\ns_cmp_lt_u32 s14, 176\ns_cbranch_scc1 L_Hgemv\ns_waitcnt vmcnt(0)")
    if o['h1late']: I("s_barrier")
    I("s_branch L_Hb2")
    L("L_Hgemv")
    if o['h1late']: I("s_cmp_lt_u32 s3, 2\ns_cbranch_scc1 L_Hgemv2\ns_barrier\nL_Hgemv2:")

    SEL, F, T0, T1, T2, T3, AOP, ACC, G = 104, 112, 128, 129, 130, 131, 132, 140, 144
    I(f"""v_and_b32 v{T0}, 1, v1
v_lshlrev_b32 v{T0}, 4, v{T0}
v_mov_b32 v{T1}, 0x0c0c0100
v_mov_b32 v{T2}, 0x0c0c0302
v_alignbit_b32 v{T1}, v{T1}, v{T1}, v{T0}
v_alignbit_b32 v{T2}, v{T2}, v{T2}, v{T0}
v_bfe_u32 v{T0}, v1, 1, 2
v_mov_b32 v{T3}, 0x0c0c0c0c""")
    for r in range(4):
        I(f"v_cmp_eq_u32 vcc, {r}, v{T0}\nv_cndmask_b32 v{SEL+2*r}, v{T3}, v{T1}, vcc\nv_cndmask_b32 v{SEL+2*r+1}, v{T3}, v{T2}, vcc")
    I(f"v_lshlrev_b32 v4, 4, v1")
    I(f"s_mov_b32 s15, 0xffff0000\nv_mov_b32 v{T3}, 0x3f803f80\nv_mov_b32 v{T0}, 0")
    I("s_waitcnt vmcnt(22)")
    TS(2)
    for i in range(8): I(f"v_dot2_f32_bf16 v{T0}, v{XS+i}, v{T3}, v{T0}")
    def unp(dst, src, i):
        I(f"v_lshlrev_b32 v{dst+2*i}, 16, v{src+i}\nv_and_b32 v{dst+2*i+1}, s15, v{src+i}")
    unp(F, XS, 0); unp(F, XS, 1)
    dpp("v_add_f32", T0, "quad_perm:[1,0,3,2]"); unp(F, XS, 2)
    dpp("v_add_f32", T0, "quad_perm:[2,3,0,1]"); unp(F, XS, 3)
    dpp("v_add_f32", T0, "row_half_mirror")
    I(f"v_mov_b32 v{T1}, v{T0}"); unp(F, XS, 4)
    I(f"v_permlane16_swap_b32 v{T0}, v{T1}\nv_add_f32 v{T0}, v{T0}, v{T1}\nv_mov_b32 v{T1}, v{T0}"); unp(F, XS, 5)
    I(f"v_permlane32_swap_b32 v{T0}, v{T1}\nv_add_f32 v{T0}, v{T0}, v{T1}")
    unp(F, XS, 6); unp(F, XS, 7)
    I(f"v_mul_f32 v{T0}, {f32(-1.0/512)}, v{T0}")
    I(f"v_mov_b32 v{T1}, v{T0}")
    for i in range(8): I(f"v_pk_add_f32 v[{F+2*i}:{F+2*i+1}], v[{F+2*i}:{F+2*i+1}], v[{T0}:{T1}]")
    I(f"v_pk_mul_f32 v[{T2}:{T3}], v[{F}:{F+1}], v[{F}:{F+1}]")
    for i in range(1, 8): I(f"v_pk_fma_f32 v[{T2}:{T3}], v[{F+2*i}:{F+2*i+1}], v[{F+2*i}:{F+2*i+1}], v[{T2}:{T3}]")
    I(f"v_add_f32 v{T2}, v{T2}, v{T3}")
    I("s_waitcnt vmcnt(20)")
    unp(G, XC, 0)
    dpp("v_add_f32", T2, "quad_perm:[1,0,3,2]"); unp(G, XC, 1)
    dpp("v_add_f32", T2, "quad_perm:[2,3,0,1]"); unp(G, XC, 2)
    dpp("v_add_f32", T2, "row_half_mirror")
    I(f"v_mov_b32 v{T3}, v{T2}"); unp(G, XC, 3)
    I(f"v_permlane16_swap_b32 v{T2}, v{T3}\nv_add_f32 v{T2}, v{T2}, v{T3}\nv_mov_b32 v{T3}, v{T2}"); unp(G, XC, 4)
    I(f"v_permlane32_swap_b32 v{T2}, v{T3}\nv_add_f32 v{T2}, v{T2}, v{T3}")
    I(f"v_mul_f32 v{T2}, {f32(1.0/512)}, v{T2}")
    I(f"v_cvt_pk_bf16_f32 v{T3}, v{T0}, v{T2}")
    unp(G, XC, 5)
    I(f"v_lshlrev_b32 v{T0}, 16, v{T3}\nv_and_b32 v{T2}, s15, v{T3}")
    I(f"v_add_f32 v{T2}, {f32(1e-5)}, v{T2}\nv_cvt_pk_bf16_f32 v{T2}, v{T2}, v{T2}\nv_and_b32 v{T2}, s15, v{T2}\nv_sqrt_f32 v{T2}, v{T2}")
    unp(G, XC, 6)
    I(f"v_cvt_pk_bf16_f32 v{T2}, v{T2}, v{T2}\nv_and_b32 v{T2}, s15, v{T2}\nv_rcp_f32 v{T2}, v{T2}")
    unp(G, XC, 7)
    I(f"v_mov_b32 v{T1}, v{T0}\nv_mov_b32 v{T3}, v{T2}")
    XP = XS
    for i in range(8):
        p = f"v[{G+2*i}:{G+2*i+1}]"
        I(f"v_pk_add_f32 {p}, {p}, v[{T0}:{T1}]")
        if o['ln_mimic']:
            I(f"v_cvt_pk_bf16_f32 v{XP+i}, v{G+2*i}, v{G+2*i+1}")
            unp(G, XP, i)
        I(f"v_pk_mul_f32 {p}, {p}, v[{T2}:{T3}]")
        I(f"v_cvt_pk_bf16_f32 v{XP+i}, v{G+2*i}, v{G+2*i+1}")
    TS(3)
    def aop(n):
        for r in range(4): I(f"v_perm_b32 v{AOP+4*(n%2)+r}, v{XP+n//2}, v{XP+n//2}, v{SEL+2*r+(n%2)}")
    aop(0)
    for n in range(16):
        if n < 15: aop(n + 1)
        I(f"s_waitcnt vmcnt({4+15-n})")
        mfma(ACC, AOP + 4 * (n % 2), WR + 4 * n, n == 0)
    I(f"s_mov_b32 s15, 0xffffff00\nv_mov_b32 v{T0}, s43\ns_sub_u32 s12, s13, {O_H1B-O_H1:#x}")
    for r in range(4): I(f"v_and_or_b32 v{ACC+r}, v{ACC+r}, s15, v{T0}")
    I("s_cmp_ge_u32 s3, 2\ns_cbranch_scc1 L_Hpub2")
    if o['h1fast']: I(f"buffer_store_dwordx4 {vr(ACC)}, v4, {WS}, s12 offen")
    L("L_Hpub2")
    I(f"buffer_store_dwordx4 {vr(ACC)}, v4, {WS}, s13 offen sc1")
    TS(4)
    if o['h1late']: I("s_cmp_ge_u32 s3, 2\ns_cbranch_scc1 L_Hpub3\ns_barrier\nL_Hpub3:")
    I("s_waitcnt vmcnt(1)\ns_branch L_Hb2")

    L("L_Hpoll1")
    I(f"""s_lshl_b32 s15, s6, 2
s_add_u32 s15, s15, s7
s_lshl_b32 s15, s15, 2
s_add_u32 s15, s15, s3
s_sub_u32 s15, s15, 4
s_lshl_b32 s15, s15, 12
s_add_u32 s15, s15, {O_H3:#x}
v_lshlrev_b32 v4, 4, v1
v_mov_b32 v8, -1
v_mov_b32 v9, -1
v_mov_b32 v10, -1
v_mov_b32 v11, -1""")
    if o['clean']:
        for n in range(4): I(f"buffer_store_dwordx4 v[8:11], v4, {WS}, s15 offen offset:{1024*n} sc1")
    I(f"""v_subrev_u32 v5, 256, v0
v_lshlrev_b32 v4, 2, v5
s_lshl_b32 s10, s6, 13
s_add_u32 s10, s10, {O_H1 if o['h1fast'] else O_H1B:#x}
s_add_u32 s11, s10, 4096
v_lshrrev_b32 v6, 7, v5
v_mul_u32_u24 v6, 320, v6
v_bfe_u32 v12, v5, 2, 4
v_lshl_add_u32 v6, v12, 4, v6
v_bfe_u32 v12, v5, 6, 1
v_lshl_add_u32 v6, v12, 3, v6
v_and_b32 v5, 3, v5
v_lshl_add_u32 v5, v5, 1, v6
v_add_u32 v5, {L_QB}, v5
s_mov_b32 s12, 0""")
    if o['h1late']: I("s_barrier")
    L("L_Hpoll1l")
    for p in range(8):
        I(f"buffer_load_dword v{12+p}, v4, {WS}, s{10+p//4} offen offset:{1024*(p%4)} sc1")
    I("s_add_u32 s12, s12, 1")
    if o['h1fast']:
        I(f"s_cmp_eq_u32 s12, {o['fastn']}\ns_cselect_b32 s15, {O_H1B-O_H1:#x}, 0\ns_add_u32 s10, s10, s15\ns_add_u32 s11, s11, s15")
    I("s_waitcnt vmcnt(0)")
    I("v_xor_b32 v20, s43, v12")
    for p in range(1, 8): I(f"v_bitop3_b32 v20, v20, v{12+p}, s43 bitop3:0xf6")
    I(f"v_and_b32 v20, 0xff, v20\nv_cmp_ne_u32 vcc, 0, v20\ns_cmp_gt_u32 s12, {SPIN}\ns_cbranch_scc1 L_Hpoll1d\ns_cbranch_vccnz L_Hpoll1l")
    L("L_Hpoll1d")
    TS(5)
    if prof: I("s_mov_b32 s88, s12")
    I("v_add_f32 v12, v12, v13\nv_add_f32 v14, v14, v15\nv_add_f32 v16, v16, v17\nv_add_f32 v18, v18, v19\nv_add_f32 v12, v12, v14\nv_add_f32 v16, v16, v18\nv_add_f32 v12, v12, v16")
    I("v_cvt_pk_bf16_f32 v12, v12, v12\nds_write_b16 v5, v12")
    L("L_Hb2")
    QO = 8
    I(f"""v_xor_b32 v6, v2, v3
v_lshlrev_b32 v6, 4, v6
v_lshl_add_u32 v6, v3, 8, v6
s_lshl_b32 s11, s3, 13
v_add_u32 v6, s11, v6""")
    for ks in range(4):
        I(f"ds_read_b128 {vr(UK+4*ks)}, v6")
        if ks < 3: I(f"v_xor_b32 v6, {64*(ks ^ (ks+1))}, v6")
    I(f"v_bfe_u32 v4, v3, 2, 1\nv_mul_u32_u24 v4, 320, v4\nv_lshl_add_u32 v4, v2, 4, v4\nv_add_u32 v4, {L_QB}, v4")
    I(f"v_lshlrev_b32 v5, 16, v2\nv_lshl_add_u32 v5, v3, 2, v5\ns_lshl_b32 s10, s6, 11\ns_lshl_b32 s11, s7, 9\ns_add_u32 s10, s10, s11\ns_lshl_b32 s11, s3, 6\ns_add_u32 s10, s10, s11\ns_add_u32 s10, s10, {O_H2:#x}")
    I("s_and_b32 s11, s42, 0xffff\nv_mov_b32 v29, s11\ns_mov_b32 s11, 0xffff0000")
    I("s_waitcnt lgkmcnt(0)\ns_barrier")
    for ks in range(4): I(f"ds_read_b128 {vr(QO+4*ks)}, v4 offset:{64*ks}")
    for ks in range(4):
        I(f"s_waitcnt lgkmcnt({3-ks})")
        mfma(24, QO + 4 * ks, UK + 4 * ks, ks == 0)
    exec_set(0xffffffff, 0)
    I("v_cvt_pk_bf16_f32 v28, v24, v24\nv_and_or_b32 v28, v28, s11, v29")
    I(f"buffer_store_dword v28, v5, {WS}, s10 offen sc1")
    exec_all()
    TS(6)
    C("C weights -> LDS; half of the waves take w_uv, the other half w_o")
    I(f"s_mov_b64 s[56:57], s[26:27]\ns_mov_b64 s[52:53], s[34:35]\ns_mov_b32 s54, {GUSZ}")
    I(f"""v_lshrrev_b32 v6, 5, v1
v_and_b32 v7, 31, v1
v_lshlrev_b32 v14, 1, v6
v_xor_b32 v7, v7, v14
v_lshlrev_b32 v6, 10, v6
v_lshl_add_u32 v10, v7, 4, v6
v_xor_b32 v11, 0x40, v10
v_xor_b32 v12, 0x80, v10
v_xor_b32 v13, 0xc0, v10""")
    I("s_xor_b32 s15, s8, s9\ns_lshr_b32 s12, s3, 2\ns_and_b32 s13, s3, 3\ns_cmp_eq_u32 s15, s12\ns_cbranch_scc0 L_Hwo")
    I(f"""v_and_b32 v6, 2, v2
v_xor_b32 v6, v6, v3
v_lshlrev_b32 v7, 13, v2
v_lshl_add_u32 v8, v6, 4, v7
s_lshl_b32 s10, s8, 2
s_add_u32 s10, s10, s13
s_lshl_b32 s10, s10, 19
s_lshl_b32 s11, s6, 8
s_add_u32 s10, s10, s11
s_lshl_b32 s11, s13, 14
s_add_u32 s11, s11, {L_UV}""")
    for n in range(16):
        I(f"s_mov_b32 m0, s11\ns_add_u32 s11, s11, 1024\nbuffer_load_dwordx4 v8, {SV}, s10 offen {nt} lds\ns_add_u32 s10, s10, 0x8000")
        if n % 4 == 3 and n < 15: I(f"v_xor_b32 v8, {64*((n//4) ^ (n//4+1))}, v8")
    I("s_branch L_Hdn")
    L("L_Hwo")
    I(f"s_lshl_b32 s10, s6, 2\ns_add_u32 s10, s10, s13\ns_lshl_b32 s10, s10, 15\ns_lshl_b32 s11, s9, 9\ns_add_u32 s10, s10, s11\ns_lshl_b32 s11, s13, 14\ns_add_u32 s11, s11, {L_WO}")
    for n in range(16):
        I(f"s_mov_b32 m0, s11\ns_add_u32 s11, s11, 1024\nbuffer_load_dwordx4 v{10+n%4}, {SK}, s10 offen {nt} lds\ns_add_u32 s10, s10, 2048")
    L("L_Hdn")
    I("s_lshl_b32 s14, s6, 1\ns_add_u32 s14, s14, s8")
    if not o['g1']: I("s_branch L_Hnodn")
    I("s_cmp_ge_u32 s14, 43\ns_cbranch_scc1 L_Hnodn")
    I(f"s_lshl_b32 s10, s14, 3\ns_add_u32 s10, s10, s3\ns_lshl_b32 s10, s10, 12\ns_lshl_b32 s11, s9, 9\ns_add_u32 s10, s10, s11\ns_lshl_b32 s11, s3, 11\ns_add_u32 s11, s11, {L_DN}")
    I("s_and_b32 s15, s3, 1\ns_lshl_b32 s15, s15, 7\nv_xor_b32 v6, s15, v10\nv_xor_b32 v7, s15, v11")
    for n in range(2):
        I(f"s_mov_b32 m0, s11\ns_add_u32 s11, s11, 1024\nbuffer_load_dwordx4 v{6+n}, {SW}, s10 offen {nt} lds\ns_add_u32 s10, s10, 2048")
    I("s_cmp_eq_u32 s3, 1\ns_cbranch_scc0 L_Hnodn")
    I(f"""v_lshlrev_b32 v4, 8, v2
v_lshl_add_u32 v4, v3, 2, v4
s_lshr_b32 s10, s14, 2
s_lshl_b32 s10, s10, 13
s_and_b32 s11, s14, 3
s_lshl_b32 s11, s11, 6
s_add_u32 s10, s10, s11
s_add_u32 s10, s10, {O_HG:#x}
s_add_u32 s11, s10, 4096
s_add_u32 s12, s10, {88*1024}
s_add_u32 s13, s12, 4096
v_bfe_u32 v5, v1, 2, 1
v_lshlrev_b32 v5, 4, v5
v_bfe_u32 v14, v1, 4, 1
v_lshl_add_u32 v5, v14, 3, v5
v_bfe_u32 v14, v1, 3, 1
v_lshl_add_u32 v5, v14, 2, v5
v_and_b32 v14, 3, v1
v_add_u32 v5, v5, v14
v_lshlrev_b32 v5, 1, v5
v_lshrrev_b32 v14, 5, v1
v_lshl_add_u32 v5, v14, 7, v5
v_add_u32 v5, {L_HB}, v5
s_mov_b32 s15, 0""")
    L("L_HpollG")
    for p in range(16):
        I(f"buffer_load_dword v{16+p}, v4, {WS}, s{10+p//4} offen offset:{1024*(p%4)} sc1")
    I("s_add_u32 s15, s15, 1\ns_waitcnt vmcnt(0)")
    I("v_xor_b32 v32, s43, v16")
    for p in range(1, 16): I(f"v_bitop3_b32 v32, v32, v{16+p}, s43 bitop3:0xf6")
    I(f"v_and_b32 v32, 0xff, v32\nv_cmp_ne_u32 vcc, 0, v32\ns_cmp_gt_u32 s15, {SPIN}\ns_cbranch_scc1 L_HpollGd\ns_cbranch_vccnz L_HpollG")
    L("L_HpollGd")
    for b0 in (16, 24):
        I(f"v_add_f32 v{b0}, v{b0}, v{b0+1}\nv_add_f32 v{b0+2}, v{b0+2}, v{b0+3}\nv_add_f32 v{b0+4}, v{b0+4}, v{b0+5}\nv_add_f32 v{b0+6}, v{b0+6}, v{b0+7}\nv_add_f32 v{b0}, v{b0}, v{b0+2}\nv_add_f32 v{b0+4}, v{b0+4}, v{b0+6}\nv_add_f32 v{b0}, v{b0}, v{b0+4}")
    I(f"""v_cvt_pk_bf16_f32 v16, v16, v24
v_and_b32 v24, 0xffff0000, v16
v_lshlrev_b32 v16, 16, v16
v_mul_f32 v16, {f32(-math.log2(math.e))}, v16
v_exp_f32 v16, v16
v_add_f32 v16, 1.0, v16
v_rcp_f32 v16, v16
v_cvt_pk_bf16_f32 v16, v16, v16
v_lshlrev_b32 v16, 16, v16
v_mul_f32 v16, v16, v24
v_cvt_pk_bf16_f32 v16, v16, v16
ds_write_b16 v5, v16""")
    L("L_Hnodn")
    UVO, WOO, DNO, OA, HO = 32, 64, 96, 104, 112
    I(f"""v_bfe_u32 v4, v1, 2, 2
v_and_b32 v6, 3, v1
v_and_b32 v5, 1, v2
v_lshl_add_u32 v5, v4, 1, v5
v_xor_b32 v7, s3, v5
v_lshlrev_b32 v7, 5, v7
v_lshl_add_u32 v7, v4, 12, v7
v_lshl_add_u32 v7, v2, 9, v7
v_lshl_add_u32 v7, v6, 3, v7
v_lshrrev_b32 v4, 2, v1
v_and_b32 v5, 7, v4
s_lshl_b32 s10, s3, 1
v_xor_b32 v8, s10, v5
v_lshlrev_b32 v8, 5, v8
v_lshl_add_u32 v8, v4, 9, v8
v_lshl_add_u32 v8, v6, 3, v8
v_add_u32 v8, {L_WO}, v8
v_xor_b32 v9, 32, v8
v_add_u32 v10, {L_DN-L_WO}, v8
v_add_u32 v11, {L_DN-L_WO}, v9""")
    I("s_waitcnt vmcnt(0) lgkmcnt(0)")
    TS(7)
    I("s_barrier")
    C("transposed operand reads")
    for ks in range(8):
        for t in range(2):
            I(f"ds_read_b64_tr_b16 v[{UVO+4*ks+2*t}:{UVO+4*ks+2*t+1}], v7 offset:{(64*(ks//2)+8*(ks%2)+t)*256}")
    for tau in range(2):
        for ks in range(4):
            for t in range(2):
                oo = WOO + 16 * tau + 4 * ks + 2 * t
                I(f"ds_read_b64_tr_b16 v[{oo}:{oo+1}], v{8+tau} offset:{(32*ks+16*t)*512}")
    for r in range(8): I(f"v_mov_b32 v{OA+r}, 0")
    if not o['g1']: I("s_branch L_Hnodn2")
    I("s_cmp_ge_u32 s14, 43\ns_cbranch_scc1 L_Hnodn2")
    for tau in range(2):
        for t in range(2):
            oo = DNO + 4 * tau + 2 * t
            I(f"ds_read_b64_tr_b16 v[{oo}:{oo+1}], v{10+tau} offset:{16*t*512}")
    I(f"v_bfe_u32 v4, v3, 2, 1\nv_lshlrev_b32 v4, 7, v4\nv_lshl_add_u32 v4, v2, 4, v4\nv_add_u32 v4, {L_HB}, v4\nds_read_b128 {vr(HO)}, v4\ns_waitcnt lgkmcnt(0)")
    for tau in range(2): mfma(OA + 4 * tau, HO, DNO + 4 * tau, False)
    I("s_nop 7")
    L("L_Hnodn2")
    I(f"""v_lshlrev_b32 v4, 11, v2
v_lshl_add_u32 v4, v3, 4, v4
s_lshl_b32 s10, s14, 15
s_bfe_u32 s11, s3, 0x10001
s_lshl_b32 s12, s11, 14
s_add_u32 s10, s10, s12
s_lshr_b32 s12, s3, 2
s_lshl_b32 s13, s12, 13
s_add_u32 s10, s10, s13
s_and_b32 s13, s3, 1
s_lshl_b32 s15, s13, 8
s_add_u32 s10, s10, s15
s_add_u32 s10, s10, {O_H3:#x}""")
    I(f"""s_lshl_b32 s15, s11, 1
s_add_u32 s15, s15, s12
s_lshl_b32 s15, s15, 6
s_add_u32 s15, s15, {L_CF}
v_lshl_add_u32 v5, v2, 4, s15
s_lshl_b32 s15, s11, 2
s_add_u32 s15, s15, {L_CF+256}
v_mov_b32 v6, s15""")
    I(f"""s_lshl_b32 s15, s12, 1
s_add_u32 s15, s15, s11
s_mul_i32 s15, s15, 576
s_lshl_b32 s13, s13, 8
s_add_u32 s15, s15, s13
s_add_u32 s15, s15, {L_CC}
v_lshlrev_b32 v7, 4, v3
v_lshl_add_u32 v7, v2, 3, v7
v_add_u32 v7, s15, v7""")
    I(f"v_and_b32 v12, 1, v3\nv_lshlrev_b32 v12, 4, v12\nv_mov_b32 v13, 0xffff\nv_lshlrev_b32 v12, v12, v13\nv_lshrrev_b32 v13, 1, v3")
    for r in range(4):
        I(f"v_cmp_eq_u32 vcc, {r}, v13\nv_cndmask_b32 v{8+r}, 0, v12, vcc")
    I(f"""v_and_b32 v12, 3, v3
v_mul_u32_u24 v12, 576, v12
v_lshl_add_u32 v12, v2, 4, v12
v_add_u32 v12, {L_CC}, v12
v_and_b32 v13, 1, v3
v_mul_u32_u24 v13, 320, v13
v_lshl_add_u32 v13, v2, 4, v13
s_lshr_b32 s15, s3, 1
s_lshl_b32 s15, s15, 6
s_and_b32 s13, s3, 1
s_lshl_b32 s13, s13, 3
s_add_u32 s15, s15, s13
s_add_u32 s15, s15, {L_CX}
v_add_u32 v13, s15, v13
v_bfe_u32 v14, v3, 2, 1
v_mul_u32_u24 v14, 320, v14
v_lshl_add_u32 v14, v2, 4, v14
v_add_u32 v14, {L_CX}, v14""")
    I(f"""v_lshlrev_b32 v15, 17, v2
v_lshl_add_u32 v15, v3, 3, v15
s_lshl_b32 s11, s9, 3
s_add_u32 s11, s11, s3
s_lshl_b32 s11, s11, 13
s_lshl_b32 s13, s14, 7
s_add_u32 s11, s11, s13
s_add_u32 s11, s11, {O_H5:#x}""")
    I("s_waitcnt lgkmcnt(0)")
    TS(8)
    I("s_cmp_eq_u32 s3, 0\ns_cbranch_scc0 L_Hb4")
    I(f"""v_lshlrev_b32 v16, 9, v1
s_lshr_b32 s13, s6, 4
s_lshl_b32 s13, s13, 8
s_and_b32 s15, s6, 15
s_lshl_b32 s15, s15, 4
s_add_u32 s13, s13, s15
s_add_u32 s13, s13, {O_ST:#x}
s_mov_b32 s15, 0""")
    L("L_HpollS")
    I(f"""buffer_load_dwordx4 v[20:23], v16, {WS}, s13 offen sc1
s_add_u32 s15, s15, 1
s_waitcnt vmcnt(0)
v_xor_b32 v17, s42, v21
v_bitop3_b32 v17, v17, v23, s42 bitop3:0xf6
v_cmp_ne_u32 vcc, 0, v17
s_cmp_gt_u32 s15, {SPIN}
s_cbranch_scc1 L_Hb4
s_cbranch_vccnz L_HpollS""")
    L("L_Hb4")
    I("s_barrier")
    TS(9)
    PL = 116
    def payload():
        for n in range(4): I(f"buffer_load_dwordx4 {vr(PL+4*n)}, v4, {WS}, s10 offen offset:{512*n} sc1")
    payload()
    I("s_cmp_eq_u32 s3, 0\ns_cbranch_scc0 L_Hb5")
    I("v_mov_b32 v17, v20")
    for ctl in ("quad_perm:[1,0,3,2]", "quad_perm:[2,3,0,1]", "row_half_mirror", "row_mirror"): dpp("v_max_f32", 17, ctl)
    swap_red("v_max_f32", 17, 18, 16)
    I("v_sub_f32 v17, v20, v17\nv_exp_f32 v17, v17\nv_cvt_pk_bf16_f32 v17, v17, v17\nv_and_b32 v18, 0xffff0000, v17\nv_mul_f32 v18, v18, v22")
    I(f"v_lshlrev_b32 v19, 2, v1\nv_add_u32 v19, {L_CF}, v19\nds_write_b32 v19, v17")
    for ctl in ("quad_perm:[1,0,3,2]", "quad_perm:[2,3,0,1]", "row_half_mirror", "row_mirror"): dpp("v_add_f32", 18, ctl)
    swap_red("v_add_f32", 18, 17, 16)
    I(f"v_rcp_f32 v18, v18\nv_lshrrev_b32 v19, 5, v1\nv_lshlrev_b32 v19, 2, v19\nv_add_u32 v19, {L_CF+256}, v19\nds_write_b32 v19, v18\ns_waitcnt lgkmcnt(0)")
    L("L_Hb5")
    I("s_barrier")
    CA = 132
    I("ds_read_b128 v[16:19], v5\nds_read_b32 v20, v6\ns_waitcnt lgkmcnt(0)")
    for n in range(4):
        for r in range(4): I(f"v_and_b32 v{CA+4*n+r}, v{16+n}, v{8+r}")
    I("s_mov_b32 s15, 0")
    L("L_HpollP")
    I("s_waitcnt vmcnt(0)")
    I(f"v_max3_u32 v21, v{PL}, v{PL+1}, v{PL+2}")
    for i in range(3, 15, 2): I(f"v_max3_u32 v21, v21, v{PL+i}, v{PL+i+1}")
    I(f"v_max_u32 v21, v21, v{PL+15}\nv_cmp_eq_u32 vcc, -1, v21\ns_cbranch_vccz L_HpollPd\ns_add_u32 s15, s15, 1\ns_cmp_gt_u32 s15, {SPIN}\ns_cbranch_scc1 L_HpollPd")
    payload()
    I("s_branch L_HpollP")
    L("L_HpollPd")
    TS(10)
    if prof: I("s_add_u32 s90, s15, 1")
    for n in range(4): mfma(24, CA + 4 * n, PL + 4 * n, n == 0)
    exec_set(0xffffffff, 0)
    I("v_mul_f32 v24, v24, v20\nv_mul_f32 v25, v25, v20\nv_mul_f32 v26, v26, v20\nv_mul_f32 v27, v27, v20\nv_cvt_pk_bf16_f32 v24, v24, v25\nv_cvt_pk_bf16_f32 v25, v26, v27\nds_write_b64 v7, v[24:25]")
    exec_all()
    I("s_waitcnt lgkmcnt(0)\ns_barrier")
    CO = 116
    for ks in range(8): I(f"ds_read_b128 {vr(CO+4*ks)}, v12 offset:{64*ks}")
    for ks in range(8):
        I(f"s_waitcnt lgkmcnt({7-ks})")
        mfma(28, UVO + 4 * ks, CO + 4 * ks, ks == 0)
    for r in range(4): dpp("v_add_f32", 28 + r, "quad_perm:[2,3,0,1]")
    exec_set(0x00030003, 0x00030003)
    I("v_cvt_pk_bf16_f32 v28, v28, v29\nv_cvt_pk_bf16_f32 v29, v30, v31\nds_write_b64 v13, v[28:29]")
    exec_all()
    I("s_waitcnt lgkmcnt(0)\ns_barrier")
    for ks in range(4): I(f"ds_read_b128 {vr(CO+4*ks)}, v14 offset:{64*ks}")
    I("s_mov_b32 s15, 0xffffff00\nv_mov_b32 v16, s43")
    for ks in range(4):
        I(f"s_waitcnt lgkmcnt({3-ks})")
        for tau in range(2): mfma(OA + 4 * tau, CO + 4 * ks, WOO + 16 * tau + 4 * ks, False)
    exec_set(0xffffffff, 0)
    for tau in range(2): I(f"v_and_or_b32 v{18+tau}, v{OA+4*tau}, s15, v16")
    I(f"buffer_store_dwordx2 v[18:19], v15, {WS}, s11 offen sc1")
    exec_all()
    TS(11)
    I("s_branch L_fin")

    L("L_B")
    I("""s_sub_u32 s9, s5, 16
s_lshr_b32 s6, s4, 2
s_and_b32 s7, s4, 3
s_lshl_b32 s7, s7, 3
s_lshr_b32 s8, s9, 1
s_add_u32 s7, s7, s8
s_and_b32 s8, s9, 1
s_lshl_b32 s5, s8, 2
s_xor_b32 s5, s5, s3""")
    I(f"""s_lshl_b32 s10, s6, 5
s_add_u32 s10, s10, s7
s_lshl_b32 s10, s10, 3
s_add_u32 s10, s10, s5
s_lshl_b32 s10, s10, 14
s_mul_i32 s11, s5, {16*CKS}
s_mov_b32 s14, s11
v_lshlrev_b32 v4, 4, v1
s_mov_b32 s54, 0x800000
s_mov_b32 s58, 2048
s_waitcnt lgkmcnt(0)
s_mov_b64 s[44:45], s[40:41]
s_mov_b64 s[48:49], s[16:17]
s_mov_b64 s[52:53], s[18:19]
s_mov_b64 s[56:57], s[36:37]
s_load_dword s42, s[40:41], {O_EP}""")
    TS(1)
    for n in range(16):
        I(f"s_mov_b32 m0, s14\ns_add_u32 s14, s14, {CKS}\nbuffer_load_dwordx4 v4, {SW}, s10 offen {nt} lds\ns_add_u32 s10, s10, 1024")
    TS(2)
    KO, VO, QR, QO2 = 32, 96, 160, 176
    I(f"""v_lshlrev_b32 v5, 4, v0
s_lshl_b32 s12, s6, 1
s_add_u32 s12, s12, s8
s_lshl_b32 s12, s12, 15
s_add_u32 s12, s12, {O_H2:#x}
s_add_u32 s13, s12, 8192
s_add_u32 s14, s12, 16384
s_add_u32 s15, s12, 24576""")
    def h2loads():
        for n in range(4): I(f"buffer_load_dwordx4 {vr(QR+4*n)}, v5, {WS}, s{12+n} offen sc1")
    I(f"""v_mul_u32_u24 v7, {CKS}, v3
v_lshl_add_u32 v7, v2, 4, v7
v_add_u32 v6, s11, v7
v_add_u32 v7, {L_QL}, v7
v_lshrrev_b32 v8, 2, v1
v_mul_u32_u24 v8, {CKS}, v8
v_and_b32 v9, 3, v1
v_lshl_add_u32 v8, v9, 3, v8
s_lshl_b32 s9, s5, 7
v_add_u32 v8, s9, v8
v_add_u32 v9, {64*CKS}, v8
v_lshrrev_b32 v10, 7, v0
v_mul_u32_u24 v10, {CKS}, v10
v_and_b32 v11, 127, v0
v_lshl_add_u32 v10, v11, 3, v10
v_add_u32 v10, {L_QL}, v10""")
    I(f"""v_lshlrev_b32 v12, 5, v3
v_add_u32 v12, {L_MX}, v12
s_lshl_b32 s9, s5, 2
v_add_u32 v11, s9, v12
v_add_u32 v14, {L_PB}, v4
s_lshr_b32 s9, s5, 1
s_lshl_b32 s9, s9, 10
s_and_b32 s10, s5, 1
s_lshl_b32 s10, s10, 3
s_add_u32 s9, s9, s10
v_add_u32 v13, s9, v14""")
    I(f"""v_lshlrev_b32 v15, 18, v2
v_lshl_add_u32 v15, v3, 3, v15
s_lshl_b32 s10, s8, 20
s_lshr_b32 s9, s5, 2
s_lshl_b32 s9, s9, 15
s_add_u32 s10, s10, s9
s_lshl_b32 s9, s6, 14
s_add_u32 s10, s10, s9
s_lshl_b32 s9, s7, 9
s_add_u32 s10, s10, s9
s_and_b32 s9, s5, 3
s_lshl_b32 s9, s9, 7
s_add_u32 s10, s10, s9
s_add_u32 s10, s10, {O_H3:#x}""")
    I(f"""s_lshl_b32 s11, s6, 5
s_add_u32 s11, s11, s7
s_lshl_b32 s11, s11, 1
s_add_u32 s11, s11, s8
s_lshl_b32 s11, s11, 8
s_add_u32 s11, s11, {O_ST:#x}""")
    I("s_waitcnt vmcnt(0) lgkmcnt(0)\ns_add_u32 s42, s42, 1\ns_and_b32 s43, s42, 0xff")
    TS(3)
    for ks in range(16): I(f"ds_read_b128 {vr(KO+4*ks)}, v6 offset:{64*ks}")
    I("s_barrier")
    h2loads()
    for tau in range(4):
        for ks in range(4):
            for t in range(2):
                oo = VO + 16 * tau + 4 * ks + 2 * t
                I(f"ds_read_b64_tr_b16 v[{oo}:{oo+1}], v{8+ks//2} offset:{(32*(ks%2)+16*t)*CKS+32*tau}")
    TS(4)
    I("s_mov_b32 s9, 0\nv_mov_b32 v17, 0x07060302")
    L("L_Bpoll")
    I("s_waitcnt vmcnt(0)")
    I(f"v_xor_b32 v16, s42, v{QR}")
    for i in range(1, 16): I(f"v_bitop3_b32 v16, v16, v{QR+i}, s42 bitop3:0xf6")
    I(f"v_and_b32 v16, 0xffff, v16\nv_cmp_ne_u32 vcc, 0, v16\ns_cbranch_vccz L_Bpolld\ns_add_u32 s9, s9, 1\ns_cmp_gt_u32 s9, {SPIN}\ns_cbranch_scc1 L_Bpolld")
    h2loads()
    I("s_branch L_Bpoll")
    L("L_Bpolld")
    TS(5)
    if prof: I("s_add_u32 s88, s9, 1")
    for n in range(4):
        I(f"v_perm_b32 v{QR+4*n}, v{QR+4*n+1}, v{QR+4*n}, v17\nv_perm_b32 v{QR+4*n+1}, v{QR+4*n+3}, v{QR+4*n+2}, v17")
        I(f"ds_write_b64 v10, v[{QR+4*n}:{QR+4*n+1}] offset:{4*CKS*n}")
    I("s_waitcnt lgkmcnt(0)\ns_barrier")
    for ks in range(15): I(f"ds_read_b128 {vr(QO2+4*ks)}, v7 offset:{64*ks}")
    for ks in range(16):
        if ks == 1: I(f"ds_read_b128 {vr(QO2+60)}, v7 offset:{64*15}")
        I(f"s_waitcnt lgkmcnt({14 if ks == 0 else 15-ks})")
        mfma(16, KO + 4 * ks, QO2 + 4 * ks, ks == 0)
    kappa = (128 ** -0.5) * math.log2(math.e)
    if o['score_mimic']:
        I(f"s_mov_b32 s9, 0xffff0000\ns_mov_b32 s12, {f32(128 ** -0.5)}")
        for rep in range(2):
            I("v_cvt_pk_bf16_f32 v20, v16, v17\nv_cvt_pk_bf16_f32 v21, v18, v19\nv_lshlrev_b32 v16, 16, v20\nv_and_b32 v17, s9, v20\nv_lshlrev_b32 v18, 16, v21\nv_and_b32 v19, s9, v21")
            if rep == 0:
                for r in range(4): I(f"v_mul_f32 v{16+r}, s12, v{16+r}")
        kappa = math.log2(math.e)
    I(f"s_mov_b32 s9, {f32(kappa)}")
    I("v_max3_f32 v20, v16, v17, v18\nv_max_f32 v20, v20, v19")
    swap_red("v_max_f32", 20, 21, 16)
    swap_red("v_max_f32", 20, 21, 32)
    I("ds_write_b32 v11, v20\ns_waitcnt lgkmcnt(0)\ns_barrier")
    I("ds_read_b128 v[20:23], v12\nds_read_b128 v[24:27], v12 offset:16\ns_waitcnt lgkmcnt(1)\nv_max3_f32 v20, v20, v21, v22\nv_max_f32 v20, v20, v23\ns_waitcnt lgkmcnt(0)\nv_max3_f32 v20, v20, v24, v25\nv_max3_f32 v20, v20, v26, v27")
    I("v_mul_f32 v20, s9, v20")
    for r in range(4): I(f"v_fma_f32 v{16+r}, v{16+r}, s9, -v20")
    for r in range(4): I(f"v_exp_f32 v{16+r}, v{16+r}")
    I("v_cvt_pk_bf16_f32 v16, v16, v17\nv_cvt_pk_bf16_f32 v17, v18, v19\nds_write_b64 v13, v[16:17]\ns_waitcnt lgkmcnt(0)\ns_barrier")
    TS(6)
    PO, OC = 160, 176
    for ks in range(4): I(f"ds_read_b128 {vr(PO+4*ks)}, v14 offset:{1024*ks}")
    I("s_cmp_eq_u32 s3, 0\ns_cbranch_scc0 L_Bpv")
    for r in range(4): I(f"v_mov_b32 v{24+r}, 0x3f803f80")
    I("v_mov_b32 v21, s42\nv_mov_b32 v23, s42\ns_waitcnt lgkmcnt(0)")
    for ks in range(4): mfma(28, 24, PO + 4 * ks, ks == 0)
    exec_set(0xffff, 0)
    I(f"v_mov_b32 v22, v28\nbuffer_store_dwordx4 v[20:23], v4, {WS}, s11 offen sc1")
    exec_all()
    L("L_Bpv")
    I("s_mov_b32 s9, 0xfffffffe\ns_add_u32 s12, s10, 0x10000\ns_add_u32 s13, s10, 0x20000\ns_add_u32 s14, s10, 0x30000")
    for ks in range(4):
        I(f"s_waitcnt lgkmcnt({3-ks})")
        for tau in range(4): mfma(OC + 4 * tau, PO + 4 * ks, VO + 16 * tau + 4 * ks, ks == 0)
    for r in range(4):
        oo = 192 + 2 * r
        I(f"v_cvt_pk_bf16_f32 v{oo}, v{OC+r}, v{OC+4+r}\nv_cvt_pk_bf16_f32 v{oo+1}, v{OC+8+r}, v{OC+12+r}\nv_min_u32 v{oo}, s9, v{oo}\nv_min_u32 v{oo+1}, s9, v{oo+1}")
        I(f"buffer_store_dwordx2 v[{oo}:{oo+1}], v15, {WS}, s{10 if r == 0 else 11+r} offen sc1")
    TS(7)
    I("s_cmp_lg_u32 s3, 0\ns_cbranch_scc1 L_fin\ns_cmp_ge_u32 s2, 160\ns_cbranch_scc1 L_fin")
    I(f"""s_sub_u32 s9, s2, 128
s_lshl_b32 s10, s9, 13
s_add_u32 s10, s10, {O_H5:#x}
s_add_u32 s13, s10, 4096
s_lshl_b32 s11, s9, 6
v_and_b32 v5, 7, v1
v_lshlrev_b32 v5, 2, v5
buffer_load_dword v6, v5, {SX}, s11 offen
buffer_load_dword v7, v5, {SX}, s11 offen offset:32
s_mov_b32 s12, 0""")
    L("L_Dpoll")
    for n in range(8): I(f"buffer_load_dwordx4 {vr(32+4*n)}, v4, {WS}, s{10 if n < 4 else 13} offen offset:{1024*(n%4)} sc1")
    I("s_add_u32 s12, s12, 1")
    for n in range(8):
        I(f"s_waitcnt vmcnt({7-n})")
        for i in range(4):
            if n == 0 and i == 0: I("v_xor_b32 v8, s43, v32")
            else: I(f"v_bitop3_b32 v8, v8, v{32+4*n+i}, s43 bitop3:0xf6")
    I(f"v_and_b32 v8, 0xff, v8\nv_cmp_ne_u32 vcc, 0, v8\ns_cmp_gt_u32 s12, {SPIN}\ns_cbranch_scc1 L_Dpolld\ns_cbranch_vccnz L_Dpoll")
    L("L_Dpolld")
    TS(8)
    def pk(a, b): I(f"v_pk_add_f32 v[{a}:{a+1}], v[{a}:{a+1}], v[{b}:{b+1}]")
    for st in (4, 8, 16):
        for base in range(32, 64, 2 * st):
            pk(base, base + st); pk(base + 2, base + st + 2)
    for r in range(4): dpp("v_add_f32", 32 + r, "row_ror:8")
    for which in (16, 32):
        for r in range(4): I(f"v_mov_b32 v{36+r}, v{32+r}")
        for r in range(4): I(f"v_permlane{which}_swap_b32 v{32+r}, v{36+r}")
        for r in range(4): I(f"v_add_f32 v{32+r}, v{32+r}, v{36+r}")
    I("v_lshlrev_b32 v36, 16, v6\nv_and_b32 v38, 0xffff0000, v6\nv_lshlrev_b32 v37, 16, v7\nv_and_b32 v39, 0xffff0000, v7")
    for r in range(4): I(f"v_add_f32 v{32+r}, v{32+r}, v{36+r}")
    I("v_cvt_pk_bf16_f32 v32, v32, v34\nv_cvt_pk_bf16_f32 v33, v33, v35")
    exec_set(0xff, 0)
    I(f"buffer_store_dword v32, v5, {SK}, s11 offen\nbuffer_store_dword v33, v5, {SK}, s11 offen offset:32")
    I("s_cmp_lg_u32 s2, 128\ns_cbranch_scc1 L_Dend")
    exec_set(1, 0)
    I(f"v_mov_b32 v8, s42\nv_mov_b32 v9, 0\nbuffer_store_dword v8, v9, {WS}, 0 offen offset:{O_EP} sc1")
    L("L_Dend")
    exec_all()
    TS(9)
    L("L_fin")
    if prof:
        I(f"s_waitcnt lgkmcnt(0)\ns_lshl_b32 s9, s2, 3\ns_add_u32 s9, s9, s3\ns_lshl_b32 s9, s9, 6\ns_add_u32 s9, s9, {O_TS:#x}\nv_mov_b32 v9, 0")
        exec_set(1, 0)
        for k in range(16):
            I(f"v_mov_b32 v8, s{64+2*k}\nbuffer_store_dword v8, v9, {WS}, s9 offen offset:{4*k}")
    L("L_end")
    I("s_endpgm")

    src = f"""; fused single-launch MLA(absorbed) decode attention + GLU, generated by gen/gen.py
; @launch grid=(256,1,1) block=(512,1,1) lds={LDS_BYTES}
.amdgcn_target "amdgcn-amd-amdhsa--gfx950"
.text
.globl {KNAME}
.p2align 8
.type {KNAME},@function
{KNAME}:
""" + A.text() + f""".section .rodata,"a"
.p2align 6
.amdhsa_kernel {KNAME}
  .amdhsa_next_free_vgpr 240
  .amdhsa_next_free_sgpr 96
  .amdhsa_accum_offset 240
  .amdhsa_group_segment_fixed_size 0
  .amdhsa_kernarg_size 104
  .amdhsa_user_sgpr_count 2
  .amdhsa_user_sgpr_kernarg_segment_ptr 1
  .amdhsa_system_sgpr_workgroup_id_x 1
.end_amdhsa_kernel
"""
    return src

if __name__ == "__main__":
    out = "parallel_sum__compressed_kv_cla__glu_gated_glu__decode.s"
    kw = {}
    for a in sys.argv[1:]:
        k, v = a.split("=", 1)
        if k == "o": out = v
        elif k == "nt": kw[k] = v
        else: kw[k] = int(v)
    open(out, "w").write(gen(**kw))
```

```python
import sys, struct, math
from asmlib import Asm

KNAME = "parallel_sum__compressed_kv_cla__glu_gated_glu__decode_kernel"
O_EP, O_H1, O_HG, O_H2, O_ST, O_H5, O_H3, O_H1B, O_TS = 0, 0x10000, 0x50000, 0x80000, 0xA0000, 0xC0000, 0x100000, 0x300000, 0x400000
WSSZ = 0x800000
GUSZ = 512 * 1376 * 2
CKS = 1056
L_CK, L_QL, L_PB, L_MX, L_BEND = 0, 135168, 152064, 156160, 156672
L_UV, L_WO, L_DN, L_QB, L_CF, L_CC, L_CX, L_HB = 0, 65536, 131072, 147456, 148096, 148480, 150784, 151424
LDS_BYTES = 156672
SPIN = 20000

def f32(x): return "0x%08x" % struct.unpack("<I", struct.pack("<f", x))[0]
def vr(a, n=4): return f"v[{a}:{a+n-1}]"

DEF = dict(prof=0, ln_mimic=1, score_mimic=0, nt="nt", pf=1, h1fast=1, h1late=0, clean=1, g1=1, h2touch=0, fastn=12, hold=0)

def gen(**kw):
    o = dict(DEF); o.update(kw)
    prof, nt = o['prof'], o['nt']
    A = Asm(); I = A.I; L = A.L; C = A.C
    def TS(k):
        if prof: I(f"s_memrealtime s[{64+2*k}:{65+2*k}]")
    def exec_set(lo, hi):
        I(f"s_mov_b32 exec_lo, {lo:#x}\ns_mov_b32 exec_hi, {hi:#x}")
    def exec_all(): I("s_mov_b64 exec, -1")
    def swap_red(op, v, t, which):
        I(f"v_mov_b32 v{t}, v{v}\nv_permlane{which}_swap_b32 v{v}, v{t}\n{op} v{v}, v{v}, v{t}")
    def dpp(op, v, ctl): I(f"{op}_dpp v{v}, v{v}, v{v} {ctl} row_mask:0xf bank_mask:0xf")
    def mfma(d, a, b, first): I(f"v_mfma_f32_16x16x32_bf16 {vr(d)}, {vr(a)}, {vr(b)}, {'0' if first else vr(d)}")
    WS, SX, SW, SK, SV = "s[44:47]", "s[48:51]", "s[52:55]", "s[56:59]", "s[60:63]"
    TS(0)
    if o['hold']: I("s_memrealtime s[92:93]")
    I("s_load_dwordx16 s[16:31], s[0:1], 0\ns_load_dwordx8 s[32:39], s[0:1], 64\ns_load_dwordx2 s[40:41], s[0:1], 96")
    I("s_cmp_ge_u32 s2, 256\ns_cbranch_scc1 L_end")
    I("v_lshrrev_b32 v4, 6, v0\nv_and_b32 v1, 63, v0\nv_readfirstlane_b32 s3, v4\nv_lshrrev_b32 v2, 4, v1\nv_and_b32 v3, 15, v1")
    if o['pf']:
        I("s_cmp_lg_u32 s3, 7\ns_cbranch_scc1 L_nopf\ns_getpc_b64 s[6:7]")
        L("L_pc")
        I("v_lshlrev_b32 v4, 7, v1\nv_min_u32 v5, L_end-L_pc, v4\nglobal_load_dword v238, v5, s[6:7]\nv_add_u32 v4, 0x2000, v4\nv_min_u32 v5, L_end-L_pc, v4\nglobal_load_dword v239, v5, s[6:7]")
        L("L_nopf")
    I(f"s_mov_b32 s46, {WSSZ:#x}\ns_mov_b32 s47, 0x20000\ns_mov_b32 s50, 2048\ns_mov_b32 s51, 0x20000\ns_mov_b32 s55, 0x20000\ns_mov_b32 s59, 0x20000\ns_mov_b32 s63, 0x20000")
    if prof:
        for k in range(1, 16): I(f"s_mov_b32 s{64+2*k}, 0")
    I("s_and_b32 s4, s2, 7\ns_lshr_b32 s5, s2, 3")
    I("s_cmp_ge_u32 s2, 128\ns_cbranch_scc1 L_B")

    C("H role: head, quarter")
    I("s_lshl_b32 s6, s4, 2\ns_lshr_b32 s15, s5, 2\ns_add_u32 s6, s6, s15\ns_and_b32 s7, s5, 3\ns_lshr_b32 s8, s7, 1\ns_and_b32 s9, s7, 1")
    I("s_cmp_lt_u32 s3, 2\ns_cbranch_scc0 L_Hg")
    I(f"""s_lshl_b32 s12, s7, 1
s_add_u32 s12, s12, s3
s_lshl_b32 s13, s6, 3
s_add_u32 s13, s13, s12
s_lshl_b32 s13, s13, 10
s_add_u32 s13, s13, {O_H1B:#x}
s_lshl_b32 s12, s12, 6
s_mov_b32 s10, 8192
s_lshl_b32 s11, s12, 13
s_lshl_b32 s15, s6, 8
s_add_u32 s11, s11, s15
s_mov_b32 s54, 0x400000
s_mov_b32 s14, 0
s_waitcnt lgkmcnt(0)
s_mov_b64 s[52:53], s[20:21]
s_branch L_Hp""")
    L("L_Hg")
    I(f"""s_cmp_eq_u32 s3, 3
s_cselect_b32 s14, 128, 0
s_add_u32 s14, s14, s2
s_lshl_b32 s13, s14, 10
s_add_u32 s13, s13, {O_HG:#x}
s_cmp_ge_u32 s14, 88
s_cselect_b32 s15, 88, 0
s_sub_u32 s15, s14, s15
s_and_b32 s12, s15, 7
s_lshl_b32 s12, s12, 6
s_mov_b32 s10, 2752
s_mul_i32 s11, s12, 2752
s_lshr_b32 s15, s15, 3
s_lshl_b32 s15, s15, 8
s_add_u32 s11, s11, s15
s_mov_b32 s54, {GUSZ}
s_waitcnt lgkmcnt(0)
s_cmp_ge_u32 s14, 88
s_cselect_b64 s[52:53], s[32:33], s[30:31]""")
    if not o['g1']: I("s_mov_b32 s14, 200")
    L("L_Hp")
    I("s_mov_b64 s[44:45], s[40:41]\ns_mov_b64 s[48:49], s[16:17]\ns_mov_b64 s[56:57], s[22:23]\ns_mov_b32 s58, 0x400000\ns_mov_b64 s[60:61], s[24:25]\ns_mov_b32 s62, 0x400000")
    I(f"s_load_dword s42, s[40:41], {O_EP}")
    TS(1)
    XS, XC, WR, UK = 8, 16, 24, 88
    I(f"""v_lshrrev_b32 v8, 3, v3
v_lshlrev_b32 v8, 10, v8
v_lshl_add_u32 v5, v2, 5, v8
v_and_b32 v9, 7, v1
v_lshl_add_u32 v9, v2, 3, v9
v_lshl_add_u32 v4, v9, 4, v8
s_lshl_b32 s15, s10, 4
v_mul_lo_u32 v6, v2, s15
v_lshl_add_u32 v6, v3, 4, v6""")
    I("s_cmp_lt_u32 s3, 2\ns_cbranch_scc1 L_Hld\ns_barrier\ns_cmp_ge_u32 s3, 4\ns_cbranch_scc1 L_Huk\ns_cmp_ge_u32 s14, 176\ns_cbranch_scc1 L_Huk")
    L("L_Hld")
    I(f"s_lshl_b32 s15, s12, 1")
    I(f"buffer_load_dwordx4 {vr(XS)}, v4, {SX}, 0 offen\nbuffer_load_dwordx4 {vr(XS+4)}, v4, {SX}, 0 offen offset:512")
    I(f"buffer_load_dwordx4 {vr(XC)}, v5, {SX}, s15 offen\nbuffer_load_dwordx4 {vr(XC+4)}, v5, {SX}, s15 offen offset:16")
    for n in range(16):
        I(f"buffer_load_dwordx4 {vr(WR+4*n)}, v6, {SW}, s11 offen {nt}")
        if n < 15: I("s_add_u32 s11, s11, s10")
    I("s_cmp_ge_u32 s3, 2\ns_cbranch_scc1 L_Huk\ns_barrier")
    L("L_Huk")
    C("w_uk rows 128j+16w.. -> LDS (own UV slice)")
    I(f"""v_xor_b32 v7, v3, v2
v_lshlrev_b32 v7, 4, v7
v_lshl_add_u32 v7, v2, 13, v7
s_lshl_b32 s15, s7, 3
s_add_u32 s15, s15, s3
s_lshl_b32 s15, s15, 17
s_lshl_b32 s11, s6, 8
s_add_u32 s15, s15, s11
s_lshl_b32 s11, s3, 13""")
    for n in range(4):
        I(f"s_mov_b32 m0, s11\ns_add_u32 s11, s11, 1024\nbuffer_load_dwordx4 v7, {SK}, s15 offen {nt} lds\ns_add_u32 s15, s15, 0x8000")
        if n < 3: I(f"v_xor_b32 v7, {64*(n ^ (n+1))}, v7")
    I("s_waitcnt lgkmcnt(0)\ns_add_u32 s42, s42, 1\ns_and_b32 s43, s42, 0xff")
    I("s_cmp_ge_u32 s3, 4\ns_cbranch_scc1 L_Hpoll1\ns_cmp_lt_u32 s14, 176\ns_cbranch_scc1 L_Hgemv\ns_waitcnt vmcnt(0)")
    if o['h1late']: I("s_barrier")
    I("s_branch L_Hb2")
    L("L_Hgemv")
    if o['h1late']: I("s_cmp_lt_u32 s3, 2\ns_cbranch_scc1 L_Hgemv2\ns_barrier\nL_Hgemv2:")

    SEL, F, T0, T1, T2, T3, AOP, ACC, G = 104, 112, 128, 129, 130, 131, 132, 140, 144
    I(f"""v_and_b32 v{T0}, 1, v1
v_lshlrev_b32 v{T0}, 4, v{T0}
v_mov_b32 v{T1}, 0x0c0c0100
v_mov_b32 v{T2}, 0x0c0c0302
v_alignbit_b32 v{T1}, v{T1}, v{T1}, v{T0}
v_alignbit_b32 v{T2}, v{T2}, v{T2}, v{T0}
v_bfe_u32 v{T0}, v1, 1, 2
v_mov_b32 v{T3}, 0x0c0c0c0c""")
    for r in range(4):
        I(f"v_cmp_eq_u32 vcc, {r}, v{T0}\nv_cndmask_b32 v{SEL+2*r}, v{T3}, v{T1}, vcc\nv_cndmask_b32 v{SEL+2*r+1}, v{T3}, v{T2}, vcc")
    I(f"v_lshlrev_b32 v4, 4, v1")
    I(f"s_mov_b32 s15, 0xffff0000\nv_mov_b32 v{T3}, 0x3f803f80\nv_mov_b32 v{T0}, 0")
    I("s_waitcnt vmcnt(22)")
    TS(2)
    for i in range(8): I(f"v_dot2_f32_bf16 v{T0}, v{XS+i}, v{T3}, v{T0}")
    def unp(dst, src, i):
        I(f"v_lshlrev_b32 v{dst+2*i}, 16, v{src+i}\nv_and_b32 v{dst+2*i+1}, s15, v{src+i}")
    unp(F, XS, 0); unp(F, XS, 1)
    dpp("v_add_f32", T0, "quad_perm:[1,0,3,2]"); unp(F, XS, 2)
    dpp("v_add_f32", T0, "quad_perm:[2,3,0,1]"); unp(F, XS, 3)
    dpp("v_add_f32", T0, "row_half_mirror")
    I(f"v_mov_b32 v{T1}, v{T0}"); unp(F, XS, 4)
    I(f"v_permlane16_swap_b32 v{T0}, v{T1}\nv_add_f32 v{T0}, v{T0}, v{T1}\nv_mov_b32 v{T1}, v{T0}"); unp(F, XS, 5)
    I(f"v_permlane32_swap_b32 v{T0}, v{T1}\nv_add_f32 v{T0}, v{T0}, v{T1}")
    unp(F, XS, 6); unp(F, XS, 7)
    I(f"v_mul_f32 v{T0}, {f32(-1.0/512)}, v{T0}")
    I(f"v_mov_b32 v{T1}, v{T0}")
    for i in range(8): I(f"v_pk_add_f32 v[{F+2*i}:{F+2*i+1}], v[{F+2*i}:{F+2*i+1}], v[{T0}:{T1}]")
    I(f"v_pk_mul_f32 v[{T2}:{T3}], v[{F}:{F+1}], v[{F}:{F+1}]")
    for i in range(1, 8): I(f"v_pk_fma_f32 v[{T2}:{T3}], v[{F+2*i}:{F+2*i+1}], v[{F+2*i}:{F+2*i+1}], v[{T2}:{T3}]")
    I(f"v_add_f32 v{T2}, v{T2}, v{T3}")
    I("s_waitcnt vmcnt(20)")
    unp(G, XC, 0)
    dpp("v_add_f32", T2, "quad_perm:[1,0,3,2]"); unp(G, XC, 1)
    dpp("v_add_f32", T2, "quad_perm:[2,3,0,1]"); unp(G, XC, 2)
    dpp("v_add_f32", T2, "row_half_mirror")
    I(f"v_mov_b32 v{T3}, v{T2}"); unp(G, XC, 3)
    I(f"v_permlane16_swap_b32 v{T2}, v{T3}\nv_add_f32 v{T2}, v{T2}, v{T3}\nv_mov_b32 v{T3}, v{T2}"); unp(G, XC, 4)
    I(f"v_permlane32_swap_b32 v{T2}, v{T3}\nv_add_f32 v{T2}, v{T2}, v{T3}")
    I(f"v_mul_f32 v{T2}, {f32(1.0/512)}, v{T2}")
    I(f"v_cvt_pk_bf16_f32 v{T3}, v{T0}, v{T2}")
    unp(G, XC, 5)
    I(f"v_lshlrev_b32 v{T0}, 16, v{T3}\nv_and_b32 v{T2}, s15, v{T3}")
    I(f"v_add_f32 v{T2}, {f32(1e-5)}, v{T2}\nv_cvt_pk_bf16_f32 v{T2}, v{T2}, v{T2}\nv_and_b32 v{T2}, s15, v{T2}\nv_sqrt_f32 v{T2}, v{T2}")
    unp(G, XC, 6)
    I(f"v_cvt_pk_bf16_f32 v{T2}, v{T2}, v{T2}\nv_and_b32 v{T2}, s15, v{T2}\nv_rcp_f32 v{T2}, v{T2}")
    unp(G, XC, 7)
    I(f"v_mov_b32 v{T1}, v{T0}\nv_mov_b32 v{T3}, v{T2}")
    XP = XS
    for i in range(8):
        p = f"v[{G+2*i}:{G+2*i+1}]"
        I(f"v_pk_add_f32 {p}, {p}, v[{T0}:{T1}]")
        if o['ln_mimic']:
            I(f"v_cvt_pk_bf16_f32 v{XP+i}, v{G+2*i}, v{G+2*i+1}")
            unp(G, XP, i)
        I(f"v_pk_mul_f32 {p}, {p}, v[{T2}:{T3}]")
        I(f"v_cvt_pk_bf16_f32 v{XP+i}, v{G+2*i}, v{G+2*i+1}")
    TS(3)
    def aop(n):
        for r in range(4): I(f"v_perm_b32 v{AOP+4*(n%2)+r}, v{XP+n//2}, v{XP+n//2}, v{SEL+2*r+(n%2)}")
    aop(0)
    for n in range(16):
        if n < 15: aop(n + 1)
        I(f"s_waitcnt vmcnt({4+15-n})")
        mfma(ACC, AOP + 4 * (n % 2), WR + 4 * n, n == 0)
    I(f"s_mov_b32 s15, 0xffffff00\nv_mov_b32 v{T0}, s43\ns_sub_u32 s12, s13, {O_H1B-O_H1:#x}")
    for r in range(4): I(f"v_and_or_b32 v{ACC+r}, v{ACC+r}, s15, v{T0}")
    I("s_cmp_ge_u32 s3, 2\ns_cbranch_scc1 L_Hpub2")
    if o['h1fast']: I(f"buffer_store_dwordx4 {vr(ACC)}, v4, {WS}, s12 offen")
    L("L_Hpub2")
    I(f"buffer_store_dwordx4 {vr(ACC)}, v4, {WS}, s13 offen sc1")
    TS(4)
    if o['h1late']: I("s_cmp_ge_u32 s3, 2\ns_cbranch_scc1 L_Hpub3\ns_barrier\nL_Hpub3:")
    I("s_waitcnt vmcnt(1)\ns_branch L_Hb2")

    L("L_Hpoll1")
    I(f"""s_lshl_b32 s15, s6, 2
s_add_u32 s15, s15, s7
s_lshl_b32 s15, s15, 2
s_add_u32 s15, s15, s3
s_sub_u32 s15, s15, 4
s_lshl_b32 s15, s15, 12
s_add_u32 s15, s15, {O_H3:#x}
v_lshlrev_b32 v4, 4, v1
v_mov_b32 v8, -1
v_mov_b32 v9, -1
v_mov_b32 v10, -1
v_mov_b32 v11, -1""")
    if o['clean']:
        for n in range(4): I(f"buffer_store_dwordx4 v[8:11], v4, {WS}, s15 offen offset:{1024*n} sc1")
    I(f"""v_subrev_u32 v5, 256, v0
v_lshlrev_b32 v4, 2, v5
s_lshl_b32 s10, s6, 13
s_add_u32 s10, s10, {O_H1 if o['h1fast'] else O_H1B:#x}
s_add_u32 s11, s10, 4096
v_lshrrev_b32 v6, 7, v5
v_mul_u32_u24 v6, 320, v6
v_bfe_u32 v12, v5, 2, 4
v_lshl_add_u32 v6, v12, 4, v6
v_bfe_u32 v12, v5, 6, 1
v_lshl_add_u32 v6, v12, 3, v6
v_and_b32 v5, 3, v5
v_lshl_add_u32 v5, v5, 1, v6
v_add_u32 v5, {L_QB}, v5
s_mov_b32 s12, 0""")
    if o['h1late']: I("s_barrier")
    L("L_Hpoll1l")
    for p in range(8):
        I(f"buffer_load_dword v{12+p}, v4, {WS}, s{10+p//4} offen offset:{1024*(p%4)} sc1")
    I("s_add_u32 s12, s12, 1")
    if o['h1fast']:
        I(f"s_cmp_eq_u32 s12, {o['fastn']}\ns_cselect_b32 s15, {O_H1B-O_H1:#x}, 0\ns_add_u32 s10, s10, s15\ns_add_u32 s11, s11, s15")
    I("s_waitcnt vmcnt(0)")
    I("v_xor_b32 v20, s43, v12")
    for p in range(1, 8): I(f"v_bitop3_b32 v20, v20, v{12+p}, s43 bitop3:0xf6")
    I(f"v_and_b32 v20, 0xff, v20\nv_cmp_ne_u32 vcc, 0, v20\ns_cmp_gt_u32 s12, {SPIN}\ns_cbranch_scc1 L_Hpoll1d\ns_cbranch_vccnz L_Hpoll1l")
    L("L_Hpoll1d")
    TS(5)
    if prof: I("s_mov_b32 s88, s12")
    I("v_add_f32 v12, v12, v13\nv_add_f32 v14, v14, v15\nv_add_f32 v16, v16, v17\nv_add_f32 v18, v18, v19\nv_add_f32 v12, v12, v14\nv_add_f32 v16, v16, v18\nv_add_f32 v12, v12, v16")
    I("v_cvt_pk_bf16_f32 v12, v12, v12\nds_write_b16 v5, v12")
    L("L_Hb2")
    QO = 8
    I(f"""v_xor_b32 v6, v2, v3
v_lshlrev_b32 v6, 4, v6
v_lshl_add_u32 v6, v3, 8, v6
s_lshl_b32 s11, s3, 13
v_add_u32 v6, s11, v6""")
    for ks in range(4):
        I(f"ds_read_b128 {vr(UK+4*ks)}, v6")
        if ks < 3: I(f"v_xor_b32 v6, {64*(ks ^ (ks+1))}, v6")
    I(f"v_bfe_u32 v4, v3, 2, 1\nv_mul_u32_u24 v4, 320, v4\nv_lshl_add_u32 v4, v2, 4, v4\nv_add_u32 v4, {L_QB}, v4")
    I(f"v_lshlrev_b32 v5, 16, v2\nv_lshl_add_u32 v5, v3, 2, v5\ns_lshl_b32 s10, s6, 11\ns_lshl_b32 s11, s7, 9\ns_add_u32 s10, s10, s11\ns_lshl_b32 s11, s3, 6\ns_add_u32 s10, s10, s11\ns_add_u32 s10, s10, {O_H2:#x}")
    I("s_and_b32 s11, s42, 0xffff\nv_mov_b32 v29, s11\ns_mov_b32 s11, 0xffff0000")
    I("s_waitcnt lgkmcnt(0)\ns_barrier")
    for ks in range(4): I(f"ds_read_b128 {vr(QO+4*ks)}, v4 offset:{64*ks}")
    for ks in range(4):
        I(f"s_waitcnt lgkmcnt({3-ks})")
        mfma(24, QO + 4 * ks, UK + 4 * ks, ks == 0)
    exec_set(0xffffffff, 0)
    I("v_cvt_pk_bf16_f32 v28, v24, v24\nv_and_or_b32 v28, v28, s11, v29")
    I(f"buffer_store_dword v28, v5, {WS}, s10 offen sc1")
    exec_all()
    TS(6)
    C("C weights -> LDS; half of the waves take w_uv, the other half w_o")
    I(f"s_mov_b64 s[56:57], s[26:27]\ns_mov_b64 s[52:53], s[34:35]\ns_mov_b32 s54, {GUSZ}")
    I(f"""v_lshrrev_b32 v6, 5, v1
v_and_b32 v7, 31, v1
v_lshlrev_b32 v14, 1, v6
v_xor_b32 v7, v7, v14
v_lshlrev_b32 v6, 10, v6
v_lshl_add_u32 v10, v7, 4, v6
v_xor_b32 v11, 0x40, v10
v_xor_b32 v12, 0x80, v10
v_xor_b32 v13, 0xc0, v10""")
    I("s_xor_b32 s15, s8, s9\ns_lshr_b32 s12, s3, 2\ns_and_b32 s13, s3, 3\ns_cmp_eq_u32 s15, s12\ns_cbranch_scc0 L_Hwo")
    I(f"""v_and_b32 v6, 2, v2
v_xor_b32 v6, v6, v3
v_lshlrev_b32 v7, 13, v2
v_lshl_add_u32 v8, v6, 4, v7
s_lshl_b32 s10, s8, 2
s_add_u32 s10, s10, s13
s_lshl_b32 s10, s10, 19
s_lshl_b32 s11, s6, 8
s_add_u32 s10, s10, s11
s_lshl_b32 s11, s13, 14
s_add_u32 s11, s11, {L_UV}""")
    for n in range(16):
        I(f"s_mov_b32 m0, s11\ns_add_u32 s11, s11, 1024\nbuffer_load_dwordx4 v8, {SV}, s10 offen {nt} lds\ns_add_u32 s10, s10, 0x8000")
        if n % 4 == 3 and n < 15: I(f"v_xor_b32 v8, {64*((n//4) ^ (n//4+1))}, v8")
    I("s_branch L_Hdn")
    L("L_Hwo")
    I(f"s_lshl_b32 s10, s6, 2\ns_add_u32 s10, s10, s13\ns_lshl_b32 s10, s10, 15\ns_lshl_b32 s11, s9, 9\ns_add_u32 s10, s10, s11\ns_lshl_b32 s11, s13, 14\ns_add_u32 s11, s11, {L_WO}")
    for n in range(16):
        I(f"s_mov_b32 m0, s11\ns_add_u32 s11, s11, 1024\nbuffer_load_dwordx4 v{10+n%4}, {SK}, s10 offen {nt} lds\ns_add_u32 s10, s10, 2048")
    L("L_Hdn")
    I("s_lshl_b32 s14, s6, 1\ns_add_u32 s14, s14, s8")
    if not o['g1']: I("s_branch L_Hnodn")
    I("s_cmp_ge_u32 s14, 43\ns_cbranch_scc1 L_Hnodn")
    I(f"s_lshl_b32 s10, s14, 3\ns_add_u32 s10, s10, s3\ns_lshl_b32 s10, s10, 12\ns_lshl_b32 s11, s9, 9\ns_add_u32 s10, s10, s11\ns_lshl_b32 s11, s3, 11\ns_add_u32 s11, s11, {L_DN}")
    I("s_and_b32 s15, s3, 1\ns_lshl_b32 s15, s15, 7\nv_xor_b32 v6, s15, v10\nv_xor_b32 v7, s15, v11")
    for n in range(2):
        I(f"s_mov_b32 m0, s11\ns_add_u32 s11, s11, 1024\nbuffer_load_dwordx4 v{6+n}, {SW}, s10 offen {nt} lds\ns_add_u32 s10, s10, 2048")
    I("s_cmp_eq_u32 s3, 1\ns_cbranch_scc0 L_Hnodn")
    I(f"""v_lshlrev_b32 v4, 8, v2
v_lshl_add_u32 v4, v3, 2, v4
s_lshr_b32 s10, s14, 2
s_lshl_b32 s10, s10, 13
s_and_b32 s11, s14, 3
s_lshl_b32 s11, s11, 6
s_add_u32 s10, s10, s11
s_add_u32 s10, s10, {O_HG:#x}
s_add_u32 s11, s10, 4096
s_add_u32 s12, s10, {88*1024}
s_add_u32 s13, s12, 4096
v_bfe_u32 v5, v1, 2, 1
v_lshlrev_b32 v5, 4, v5
v_bfe_u32 v14, v1, 4, 1
v_lshl_add_u32 v5, v14, 3, v5
v_bfe_u32 v14, v1, 3, 1
v_lshl_add_u32 v5, v14, 2, v5
v_and_b32 v14, 3, v1
v_add_u32 v5, v5, v14
v_lshlrev_b32 v5, 1, v5
v_lshrrev_b32 v14, 5, v1
v_lshl_add_u32 v5, v14, 7, v5
v_add_u32 v5, {L_HB}, v5
s_mov_b32 s15, 0""")
    L("L_HpollG")
    for p in range(16):
        I(f"buffer_load_dword v{16+p}, v4, {WS}, s{10+p//4} offen offset:{1024*(p%4)} sc1")
    I("s_add_u32 s15, s15, 1\ns_waitcnt vmcnt(0)")
    I("v_xor_b32 v32, s43, v16")
    for p in range(1, 16): I(f"v_bitop3_b32 v32, v32, v{16+p}, s43 bitop3:0xf6")
    I(f"v_and_b32 v32, 0xff, v32\nv_cmp_ne_u32 vcc, 0, v32\ns_cmp_gt_u32 s15, {SPIN}\ns_cbranch_scc1 L_HpollGd\ns_cbranch_vccnz L_HpollG")
    L("L_HpollGd")
    for b0 in (16, 24):
        I(f"v_add_f32 v{b0}, v{b0}, v{b0+1}\nv_add_f32 v{b0+2}, v{b0+2}, v{b0+3}\nv_add_f32 v{b0+4}, v{b0+4}, v{b0+5}\nv_add_f32 v{b0+6}, v{b0+6}, v{b0+7}\nv_add_f32 v{b0}, v{b0}, v{b0+2}\nv_add_f32 v{b0+4}, v{b0+4}, v{b0+6}\nv_add_f32 v{b0}, v{b0}, v{b0+4}")
    I(f"""v_cvt_pk_bf16_f32 v16, v16, v24
v_and_b32 v24, 0xffff0000, v16
v_lshlrev_b32 v16, 16, v16
v_mul_f32 v16, {f32(-math.log2(math.e))}, v16
v_exp_f32 v16, v16
v_add_f32 v16, 1.0, v16
v_rcp_f32 v16, v16
v_cvt_pk_bf16_f32 v16, v16, v16
v_lshlrev_b32 v16, 16, v16
v_mul_f32 v16, v16, v24
v_cvt_pk_bf16_f32 v16, v16, v16
ds_write_b16 v5, v16""")
    L("L_Hnodn")
    UVO, WOO, DNO, OA, HO = 32, 64, 96, 104, 112
    I(f"""v_bfe_u32 v4, v1, 2, 2
v_and_b32 v6, 3, v1
v_and_b32 v5, 1, v2
v_lshl_add_u32 v5, v4, 1, v5
v_xor_b32 v7, s3, v5
v_lshlrev_b32 v7, 5, v7
v_lshl_add_u32 v7, v4, 12, v7
v_lshl_add_u32 v7, v2, 9, v7
v_lshl_add_u32 v7, v6, 3, v7
v_lshrrev_b32 v4, 2, v1
v_and_b32 v5, 7, v4
s_lshl_b32 s10, s3, 1
v_xor_b32 v8, s10, v5
v_lshlrev_b32 v8, 5, v8
v_lshl_add_u32 v8, v4, 9, v8
v_lshl_add_u32 v8, v6, 3, v8
v_add_u32 v8, {L_WO}, v8
v_xor_b32 v9, 32, v8
v_add_u32 v10, {L_DN-L_WO}, v8
v_add_u32 v11, {L_DN-L_WO}, v9""")
    I("s_waitcnt vmcnt(0) lgkmcnt(0)")
    TS(7)
    I("s_barrier")
    C("transposed operand reads")
    for ks in range(8):
        for t in range(2):
            I(f"ds_read_b64_tr_b16 v[{UVO+4*ks+2*t}:{UVO+4*ks+2*t+1}], v7 offset:{(64*(ks//2)+8*(ks%2)+t)*256}")
    for tau in range(2):
        for ks in range(4):
            for t in range(2):
                oo = WOO + 16 * tau + 4 * ks + 2 * t
                I(f"ds_read_b64_tr_b16 v[{oo}:{oo+1}], v{8+tau} offset:{(32*ks+16*t)*512}")
    for r in range(8): I(f"v_mov_b32 v{OA+r}, 0")
    if not o['g1']: I("s_branch L_Hnodn2")
    I("s_cmp_ge_u32 s14, 43\ns_cbranch_scc1 L_Hnodn2")
    for tau in range(2):
        for t in range(2):
            oo = DNO + 4 * tau + 2 * t
            I(f"ds_read_b64_tr_b16 v[{oo}:{oo+1}], v{10+tau} offset:{16*t*512}")
    I(f"v_bfe_u32 v4, v3, 2, 1\nv_lshlrev_b32 v4, 7, v4\nv_lshl_add_u32 v4, v2, 4, v4\nv_add_u32 v4, {L_HB}, v4\nds_read_b128 {vr(HO)}, v4\ns_waitcnt lgkmcnt(0)")
    for tau in range(2): mfma(OA + 4 * tau, HO, DNO + 4 * tau, False)
    I("s_nop 7")
    L("L_Hnodn2")
    I(f"""v_lshlrev_b32 v4, 11, v2
v_lshl_add_u32 v4, v3, 4, v4
s_lshl_b32 s10, s14, 15
s_bfe_u32 s11, s3, 0x10001
s_lshl_b32 s12, s11, 14
s_add_u32 s10, s10, s12
s_lshr_b32 s12, s3, 2
s_lshl_b32 s13, s12, 13
s_add_u32 s10, s10, s13
s_and_b32 s13, s3, 1
s_lshl_b32 s15, s13, 8
s_add_u32 s10, s10, s15
s_add_u32 s10, s10, {O_H3:#x}""")
    I(f"""s_lshl_b32 s15, s11, 1
s_add_u32 s15, s15, s12
s_lshl_b32 s15, s15, 6
s_add_u32 s15, s15, {L_CF}
v_lshl_add_u32 v5, v2, 4, s15
s_lshl_b32 s15, s11, 2
s_add_u32 s15, s15, {L_CF+256}
v_mov_b32 v6, s15""")
    I(f"""s_lshl_b32 s15, s12, 1
s_add_u32 s15, s15, s11
s_mul_i32 s15, s15, 576
s_lshl_b32 s13, s13, 8
s_add_u32 s15, s15, s13
s_add_u32 s15, s15, {L_CC}
v_lshlrev_b32 v7, 4, v3
v_lshl_add_u32 v7, v2, 3, v7
v_add_u32 v7, s15, v7""")
    I(f"v_and_b32 v12, 1, v3\nv_lshlrev_b32 v12, 4, v12\nv_mov_b32 v13, 0xffff\nv_lshlrev_b32 v12, v12, v13\nv_lshrrev_b32 v13, 1, v3")
    for r in range(4):
        I(f"v_cmp_eq_u32 vcc, {r}, v13\nv_cndmask_b32 v{8+r}, 0, v12, vcc")
    I(f"""v_and_b32 v12, 3, v3
v_mul_u32_u24 v12, 576, v12
v_lshl_add_u32 v12, v2, 4, v12
v_add_u32 v12, {L_CC}, v12
v_and_b32 v13, 1, v3
v_mul_u32_u24 v13, 320, v13
v_lshl_add_u32 v13, v2, 4, v13
s_lshr_b32 s15, s3, 1
s_lshl_b32 s15, s15, 6
s_and_b32 s13, s3, 1
s_lshl_b32 s13, s13, 3
s_add_u32 s15, s15, s13
s_add_u32 s15, s15, {L_CX}
v_add_u32 v13, s15, v13
v_bfe_u32 v14, v3, 2, 1
v_mul_u32_u24 v14, 320, v14
v_lshl_add_u32 v14, v2, 4, v14
v_add_u32 v14, {L_CX}, v14""")
    I(f"""v_lshlrev_b32 v15, 17, v2
v_lshl_add_u32 v15, v3, 3, v15
s_lshl_b32 s11, s9, 3
s_add_u32 s11, s11, s3
s_lshl_b32 s11, s11, 13
s_lshl_b32 s13, s14, 7
s_add_u32 s11, s11, s13
s_add_u32 s11, s11, {O_H5:#x}""")
    I("s_waitcnt lgkmcnt(0)")
    TS(8)
    I("s_cmp_eq_u32 s3, 0\ns_cbranch_scc0 L_Hb4")
    I(f"""v_lshlrev_b32 v16, 9, v1
s_lshr_b32 s13, s6, 4
s_lshl_b32 s13, s13, 8
s_and_b32 s15, s6, 15
s_lshl_b32 s15, s15, 4
s_add_u32 s13, s13, s15
s_add_u32 s13, s13, {O_ST:#x}
s_mov_b32 s15, 0""")
    L("L_HpollS")
    I(f"""buffer_load_dwordx4 v[20:23], v16, {WS}, s13 offen sc1
s_add_u32 s15, s15, 1
s_waitcnt vmcnt(0)
v_xor_b32 v17, s42, v21
v_bitop3_b32 v17, v17, v23, s42 bitop3:0xf6
v_cmp_ne_u32 vcc, 0, v17
s_cmp_gt_u32 s15, {SPIN}
s_cbranch_scc1 L_Hb4
s_cbranch_vccnz L_HpollS""")
    L("L_Hb4")
    I("s_barrier")
    TS(9)
    PL = 116
    def payload():
        for n in range(4): I(f"buffer_load_dwordx4 {vr(PL+4*n)}, v4, {WS}, s10 offen offset:{512*n} sc1")
    payload()
    I("s_cmp_eq_u32 s3, 0\ns_cbranch_scc0 L_Hb5")
    I("v_mov_b32 v17, v20")
    for ctl in ("quad_perm:[1,0,3,2]", "quad_perm:[2,3,0,1]", "row_half_mirror", "row_mirror"): dpp("v_max_f32", 17, ctl)
    swap_red("v_max_f32", 17, 18, 16)
    I("v_sub_f32 v17, v20, v17\nv_exp_f32 v17, v17\nv_cvt_pk_bf16_f32 v17, v17, v17\nv_and_b32 v18, 0xffff0000, v17\nv_mul_f32 v18, v18, v22")
    I(f"v_lshlrev_b32 v19, 2, v1\nv_add_u32 v19, {L_CF}, v19\nds_write_b32 v19, v17")
    for ctl in ("quad_perm:[1,0,3,2]", "quad_perm:[2,3,0,1]", "row_half_mirror", "row_mirror"): dpp("v_add_f32", 18, ctl)
    swap_red("v_add_f32", 18, 17, 16)
    I(f"v_rcp_f32 v18, v18\nv_lshrrev_b32 v19, 5, v1\nv_lshlrev_b32 v19, 2, v19\nv_add_u32 v19, {L_CF+256}, v19\nds_write_b32 v19, v18\ns_waitcnt lgkmcnt(0)")
    L("L_Hb5")
    I("s_barrier")
    CA = 132
    I("ds_read_b128 v[16:19], v5\nds_read_b32 v20, v6\ns_waitcnt lgkmcnt(0)")
    for n in range(4):
        for r in range(4): I(f"v_and_b32 v{CA+4*n+r}, v{16+n}, v{8+r}")
    I("s_mov_b32 s15, 0")
    L("L_HpollP")
    I("s_waitcnt vmcnt(0)")
    I(f"v_max3_u32 v21, v{PL}, v{PL+1}, v{PL+2}")
    for i in range(3, 15, 2): I(f"v_max3_u32 v21, v21, v{PL+i}, v{PL+i+1}")
    I(f"v_max_u32 v21, v21, v{PL+15}\nv_cmp_eq_u32 vcc, -1, v21\ns_cbranch_vccz L_HpollPd\ns_add_u32 s15, s15, 1\ns_cmp_gt_u32 s15, {SPIN}\ns_cbranch_scc1 L_HpollPd")
    payload()
    I("s_branch L_HpollP")
    L("L_HpollPd")
    TS(10)
    if prof: I("s_add_u32 s90, s15, 1")
    for n in range(4): mfma(24, CA + 4 * n, PL + 4 * n, n == 0)
    exec_set(0xffffffff, 0)
    I("v_mul_f32 v24, v24, v20\nv_mul_f32 v25, v25, v20\nv_mul_f32 v26, v26, v20\nv_mul_f32 v27, v27, v20\nv_cvt_pk_bf16_f32 v24, v24, v25\nv_cvt_pk_bf16_f32 v25, v26, v27\nds_write_b64 v7, v[24:25]")
    exec_all()
    I("s_waitcnt lgkmcnt(0)\ns_barrier")
    CO = 116
    for ks in range(8): I(f"ds_read_b128 {vr(CO+4*ks)}, v12 offset:{64*ks}")
    for ks in range(8):
        I(f"s_waitcnt lgkmcnt({7-ks})")
        mfma(28, UVO + 4 * ks, CO + 4 * ks, ks == 0)
    for r in range(4): dpp("v_add_f32", 28 + r, "quad_perm:[2,3,0,1]")
    exec_set(0x00030003, 0x00030003)
    I("v_cvt_pk_bf16_f32 v28, v28, v29\nv_cvt_pk_bf16_f32 v29, v30, v31\nds_write_b64 v13, v[28:29]")
    exec_all()
    I("s_waitcnt lgkmcnt(0)\ns_barrier")
    for ks in range(4): I(f"ds_read_b128 {vr(CO+4*ks)}, v14 offset:{64*ks}")
    I("s_mov_b32 s15, 0xffffff00\nv_mov_b32 v16, s43")
    for ks in range(4):
        I(f"s_waitcnt lgkmcnt({3-ks})")
        for tau in range(2): mfma(OA + 4 * tau, CO + 4 * ks, WOO + 16 * tau + 4 * ks, False)
    exec_set(0xffffffff, 0)
    for tau in range(2): I(f"v_and_or_b32 v{18+tau}, v{OA+4*tau}, s15, v16")
    I(f"buffer_store_dwordx2 v[18:19], v15, {WS}, s11 offen sc1")
    exec_all()
    TS(11)
    I("s_branch L_fin")

    L("L_B")
    I("""s_sub_u32 s9, s5, 16
s_lshr_b32 s6, s4, 2
s_and_b32 s7, s4, 3
s_lshl_b32 s7, s7, 3
s_lshr_b32 s8, s9, 1
s_add_u32 s7, s7, s8
s_and_b32 s8, s9, 1
s_lshl_b32 s5, s8, 2
s_xor_b32 s5, s5, s3""")
    I(f"""s_lshl_b32 s10, s6, 5
s_add_u32 s10, s10, s7
s_lshl_b32 s10, s10, 3
s_add_u32 s10, s10, s5
s_lshl_b32 s10, s10, 14
s_mul_i32 s11, s5, {16*CKS}
s_mov_b32 s14, s11
v_lshlrev_b32 v4, 4, v1
s_mov_b32 s54, 0x800000
s_mov_b32 s58, 2048
s_waitcnt lgkmcnt(0)
s_mov_b64 s[44:45], s[40:41]
s_mov_b64 s[48:49], s[16:17]
s_mov_b64 s[52:53], s[18:19]
s_mov_b64 s[56:57], s[36:37]
s_load_dword s42, s[40:41], {O_EP}""")
    TS(1)
    for n in range(16):
        I(f"s_mov_b32 m0, s14\ns_add_u32 s14, s14, {CKS}\nbuffer_load_dwordx4 v4, {SW}, s10 offen {nt} lds\ns_add_u32 s10, s10, 1024")
    TS(2)
    KO, VO, QR, QO2 = 32, 96, 160, 176
    I(f"""v_lshlrev_b32 v5, 4, v0
s_lshl_b32 s12, s6, 1
s_add_u32 s12, s12, s8
s_lshl_b32 s12, s12, 15
s_add_u32 s12, s12, {O_H2:#x}
s_add_u32 s13, s12, 8192
s_add_u32 s14, s12, 16384
s_add_u32 s15, s12, 24576""")
    def h2loads():
        for n in range(4): I(f"buffer_load_dwordx4 {vr(QR+4*n)}, v5, {WS}, s{12+n} offen sc1")
    I(f"""v_mul_u32_u24 v7, {CKS}, v3
v_lshl_add_u32 v7, v2, 4, v7
v_add_u32 v6, s11, v7
v_add_u32 v7, {L_QL}, v7
v_lshrrev_b32 v8, 2, v1
v_mul_u32_u24 v8, {CKS}, v8
v_and_b32 v9, 3, v1
v_lshl_add_u32 v8, v9, 3, v8
s_lshl_b32 s9, s5, 7
v_add_u32 v8, s9, v8
v_add_u32 v9, {64*CKS}, v8
v_lshrrev_b32 v10, 7, v0
v_mul_u32_u24 v10, {CKS}, v10
v_and_b32 v11, 127, v0
v_lshl_add_u32 v10, v11, 3, v10
v_add_u32 v10, {L_QL}, v10""")
    I(f"""v_lshlrev_b32 v12, 5, v3
v_add_u32 v12, {L_MX}, v12
s_lshl_b32 s9, s5, 2
v_add_u32 v11, s9, v12
v_add_u32 v14, {L_PB}, v4
s_lshr_b32 s9, s5, 1
s_lshl_b32 s9, s9, 10
s_and_b32 s10, s5, 1
s_lshl_b32 s10, s10, 3
s_add_u32 s9, s9, s10
v_add_u32 v13, s9, v14""")
    I(f"""v_lshlrev_b32 v15, 18, v2
v_lshl_add_u32 v15, v3, 3, v15
s_lshl_b32 s10, s8, 20
s_lshr_b32 s9, s5, 2
s_lshl_b32 s9, s9, 15
s_add_u32 s10, s10, s9
s_lshl_b32 s9, s6, 14
s_add_u32 s10, s10, s9
s_lshl_b32 s9, s7, 9
s_add_u32 s10, s10, s9
s_and_b32 s9, s5, 3
s_lshl_b32 s9, s9, 7
s_add_u32 s10, s10, s9
s_add_u32 s10, s10, {O_H3:#x}""")
    I(f"""s_lshl_b32 s11, s6, 5
s_add_u32 s11, s11, s7
s_lshl_b32 s11, s11, 1
s_add_u32 s11, s11, s8
s_lshl_b32 s11, s11, 8
s_add_u32 s11, s11, {O_ST:#x}""")
    I("s_waitcnt vmcnt(0) lgkmcnt(0)\ns_add_u32 s42, s42, 1\ns_and_b32 s43, s42, 0xff")
    TS(3)
    for ks in range(16): I(f"ds_read_b128 {vr(KO+4*ks)}, v6 offset:{64*ks}")
    I("s_barrier")
    h2loads()
    for tau in range(4):
        for ks in range(4):
            for t in range(2):
                oo = VO + 16 * tau + 4 * ks + 2 * t
                I(f"ds_read_b64_tr_b16 v[{oo}:{oo+1}], v{8+ks//2} offset:{(32*(ks%2)+16*t)*CKS+32*tau}")
    TS(4)
    I("s_mov_b32 s9, 0\nv_mov_b32 v17, 0x07060302")
    L("L_Bpoll")
    I("s_waitcnt vmcnt(0)")
    I(f"v_xor_b32 v16, s42, v{QR}")
    for i in range(1, 16): I(f"v_bitop3_b32 v16, v16, v{QR+i}, s42 bitop3:0xf6")
    I(f"v_and_b32 v16, 0xffff, v16\nv_cmp_ne_u32 vcc, 0, v16\ns_cbranch_vccz L_Bpolld\ns_add_u32 s9, s9, 1\ns_cmp_gt_u32 s9, {SPIN}\ns_cbranch_scc1 L_Bpolld")
    h2loads()
    I("s_branch L_Bpoll")
    L("L_Bpolld")
    TS(5)
    if prof: I("s_add_u32 s88, s9, 1")
    for n in range(4):
        I(f"v_perm_b32 v{QR+4*n}, v{QR+4*n+1}, v{QR+4*n}, v17\nv_perm_b32 v{QR+4*n+1}, v{QR+4*n+3}, v{QR+4*n+2}, v17")
        I(f"ds_write_b64 v10, v[{QR+4*n}:{QR+4*n+1}] offset:{4*CKS*n}")
    I("s_waitcnt lgkmcnt(0)\ns_barrier")
    for ks in range(15): I(f"ds_read_b128 {vr(QO2+4*ks)}, v7 offset:{64*ks}")
    for ks in range(16):
        if ks == 1: I(f"ds_read_b128 {vr(QO2+60)}, v7 offset:{64*15}")
        I(f"s_waitcnt lgkmcnt({14 if ks == 0 else 15-ks})")
        mfma(16, KO + 4 * ks, QO2 + 4 * ks, ks == 0)
    kappa = (128 ** -0.5) * math.log2(math.e)
    if o['score_mimic']:
        I(f"s_mov_b32 s9, 0xffff0000\ns_mov_b32 s12, {f32(128 ** -0.5)}")
        for rep in range(2):
            I("v_cvt_pk_bf16_f32 v20, v16, v17\nv_cvt_pk_bf16_f32 v21, v18, v19\nv_lshlrev_b32 v16, 16, v20\nv_and_b32 v17, s9, v20\nv_lshlrev_b32 v18, 16, v21\nv_and_b32 v19, s9, v21")
            if rep == 0:
                for r in range(4): I(f"v_mul_f32 v{16+r}, s12, v{16+r}")
        kappa = math.log2(math.e)
    I(f"s_mov_b32 s9, {f32(kappa)}")
    I("v_max3_f32 v20, v16, v17, v18\nv_max_f32 v20, v20, v19")
    swap_red("v_max_f32", 20, 21, 16)
    swap_red("v_max_f32", 20, 21, 32)
    I("ds_write_b32 v11, v20\ns_waitcnt lgkmcnt(0)\ns_barrier")
    I("ds_read_b128 v[20:23], v12\nds_read_b128 v[24:27], v12 offset:16\ns_waitcnt lgkmcnt(1)\nv_max3_f32 v20, v20, v21, v22\nv_max_f32 v20, v20, v23\ns_waitcnt lgkmcnt(0)\nv_max3_f32 v20, v20, v24, v25\nv_max3_f32 v20, v20, v26, v27")
    I("v_mul_f32 v20, s9, v20")
    for r in range(4): I(f"v_fma_f32 v{16+r}, v{16+r}, s9, -v20")
    for r in range(4): I(f"v_exp_f32 v{16+r}, v{16+r}")
    I("v_cvt_pk_bf16_f32 v16, v16, v17\nv_cvt_pk_bf16_f32 v17, v18, v19\nds_write_b64 v13, v[16:17]\ns_waitcnt lgkmcnt(0)\ns_barrier")
    TS(6)
    PO, OC = 160, 176
    for ks in range(4): I(f"ds_read_b128 {vr(PO+4*ks)}, v14 offset:{1024*ks}")
    I("s_cmp_eq_u32 s3, 0\ns_cbranch_scc0 L_Bpv")
    for r in range(4): I(f"v_mov_b32 v{24+r}, 0x3f803f80")
    I("v_mov_b32 v21, s42\nv_mov_b32 v23, s42\ns_waitcnt lgkmcnt(0)")
    for ks in range(4): mfma(28, 24, PO + 4 * ks, ks == 0)
    exec_set(0xffff, 0)
    I(f"v_mov_b32 v22, v28\nbuffer_store_dwordx4 v[20:23], v4, {WS}, s11 offen sc1")
    exec_all()
    L("L_Bpv")
    I("s_mov_b32 s9, 0xfffffffe\ns_add_u32 s12, s10, 0x10000\ns_add_u32 s13, s10, 0x20000\ns_add_u32 s14, s10, 0x30000")
    for ks in range(4):
        I(f"s_waitcnt lgkmcnt({3-ks})")
        for tau in range(4): mfma(OC + 4 * tau, PO + 4 * ks, VO + 16 * tau + 4 * ks, ks == 0)
    for r in range(4):
        oo = 192 + 2 * r
        I(f"v_cvt_pk_bf16_f32 v{oo}, v{OC+r}, v{OC+4+r}\nv_cvt_pk_bf16_f32 v{oo+1}, v{OC+8+r}, v{OC+12+r}\nv_min_u32 v{oo}, s9, v{oo}\nv_min_u32 v{oo+1}, s9, v{oo+1}")
        I(f"buffer_store_dwordx2 v[{oo}:{oo+1}], v15, {WS}, s{10 if r == 0 else 11+r} offen sc1")
    TS(7)
    I("s_cmp_lg_u32 s3, 0\ns_cbranch_scc1 L_fin\ns_cmp_ge_u32 s2, 160\ns_cbranch_scc1 L_fin")
    I(f"""s_sub_u32 s9, s2, 128
s_lshl_b32 s10, s9, 13
s_add_u32 s10, s10, {O_H5:#x}
s_add_u32 s13, s10, 4096
s_lshl_b32 s11, s9, 6
v_and_b32 v5, 7, v1
v_lshlrev_b32 v5, 2, v5
buffer_load_dword v6, v5, {SX}, s11 offen
buffer_load_dword v7, v5, {SX}, s11 offen offset:32
s_mov_b32 s12, 0""")
    L("L_Dpoll")
    for n in range(8): I(f"buffer_load_dwordx4 {vr(32+4*n)}, v4, {WS}, s{10 if n < 4 else 13} offen offset:{1024*(n%4)} sc1")
    I("s_add_u32 s12, s12, 1")
    for n in range(8):
        I(f"s_waitcnt vmcnt({7-n})")
        for i in range(4):
            if n == 0 and i == 0: I("v_xor_b32 v8, s43, v32")
            else: I(f"v_bitop3_b32 v8, v8, v{32+4*n+i}, s43 bitop3:0xf6")
    I(f"v_and_b32 v8, 0xff, v8\nv_cmp_ne_u32 vcc, 0, v8\ns_cmp_gt_u32 s12, {SPIN}\ns_cbranch_scc1 L_Dpolld\ns_cbranch_vccnz L_Dpoll")
    L("L_Dpolld")
    TS(8)
    def pk(a, b): I(f"v_pk_add_f32 v[{a}:{a+1}], v[{a}:{a+1}], v[{b}:{b+1}]")
    for st in (4, 8, 16):
        for base in range(32, 64, 2 * st):
            pk(base, base + st); pk(base + 2, base + st + 2)
    for r in range(4): dpp("v_add_f32", 32 + r, "row_ror:8")
    for which in (16, 32):
        for r in range(4): I(f"v_mov_b32 v{36+r}, v{32+r}")
        for r in range(4): I(f"v_permlane{which}_swap_b32 v{32+r}, v{36+r}")
        for r in range(4): I(f"v_add_f32 v{32+r}, v{32+r}, v{36+r}")
    I("v_lshlrev_b32 v36, 16, v6\nv_and_b32 v38, 0xffff0000, v6\nv_lshlrev_b32 v37, 16, v7\nv_and_b32 v39, 0xffff0000, v7")
    for r in range(4): I(f"v_add_f32 v{32+r}, v{32+r}, v{36+r}")
    I("v_cvt_pk_bf16_f32 v32, v32, v34\nv_cvt_pk_bf16_f32 v33, v33, v35")
    exec_set(0xff, 0)
    I(f"buffer_store_dword v32, v5, {SK}, s11 offen\nbuffer_store_dword v33, v5, {SK}, s11 offen offset:32")
    I("s_cmp_lg_u32 s2, 128\ns_cbranch_scc1 L_Dend")
    exec_set(1, 0)
    I(f"v_mov_b32 v8, s42\nv_mov_b32 v9, 0\nbuffer_store_dword v8, v9, {WS}, 0 offen offset:{O_EP} sc1")
    if o['hold']:
        I(f"s_add_u32 s92, s92, {o['hold']}\nL_hold:\ns_memrealtime s[94:95]\ns_waitcnt lgkmcnt(0)\ns_sub_u32 s94, s94, s92\ns_cmp_lt_i32 s94, 0\ns_cbranch_scc1 L_hold")
    L("L_Dend")
    exec_all()
    TS(9)
    L("L_fin")
    if prof:
        I(f"s_waitcnt lgkmcnt(0)\ns_lshl_b32 s9, s2, 3\ns_add_u32 s9, s9, s3\ns_lshl_b32 s9, s9, 6\ns_add_u32 s9, s9, {O_TS:#x}\nv_mov_b32 v9, 0")
        exec_set(1, 0)
        for k in range(16):
            I(f"v_mov_b32 v8, s{64+2*k}\nbuffer_store_dword v8, v9, {WS}, s9 offen offset:{4*k}")
    L("L_end")
    I("s_endpgm")

    src = f"""; fused single-launch MLA(absorbed) decode attention + GLU, generated by gen/gen.py
; @launch grid=(256,1,1) block=(512,1,1) lds={LDS_BYTES}
.amdgcn_target "amdgcn-amd-amdhsa--gfx950"
.text
.globl {KNAME}
.p2align 8
.type {KNAME},@function
{KNAME}:
""" + A.text() + f""".section .rodata,"a"
.p2align 6
.amdhsa_kernel {KNAME}
  .amdhsa_next_free_vgpr 240
  .amdhsa_next_free_sgpr 96
  .amdhsa_accum_offset 240
  .amdhsa_group_segment_fixed_size 0
  .amdhsa_kernarg_size 104
  .amdhsa_user_sgpr_count 2
  .amdhsa_user_sgpr_kernarg_segment_ptr 1
  .amdhsa_system_sgpr_workgroup_id_x 1
.end_amdhsa_kernel
"""
    return src

if __name__ == "__main__":
    out = "parallel_sum__compressed_kv_cla__glu_gated_glu__decode.s"
    kw = {}
    for a in sys.argv[1:]:
        k, v = a.split("=", 1)
        if k == "o": out = v
        elif k == "nt": kw[k] = v
        else: kw[k] = int(v)
    open(out, "w").write(gen(**kw))
```

```python
import sys, struct, math
from asmlib import Asm

KNAME = "parallel_sum__compressed_kv_cla__glu_gated_glu__decode_kernel"
O_EP, O_H1, O_HG, O_H2, O_ST, O_H5, O_H3, O_H1B, O_TS = 0, 0x10000, 0x50000, 0x80000, 0xA0000, 0xC0000, 0x100000, 0x300000, 0x400000
WSSZ = 0x800000
GUSZ = 512 * 1376 * 2
CKS = 1056
L_CK, L_QL, L_PB, L_MX, L_BEND = 0, 135168, 152064, 156160, 156672
L_UV, L_WO, L_DN, L_QB, L_CF, L_CC, L_CX, L_HB = 0, 65536, 131072, 147456, 148096, 148480, 150784, 151424
LDS_BYTES = 156672
SPIN = 20000

def f32(x): return "0x%08x" % struct.unpack("<I", struct.pack("<f", x))[0]
def vr(a, n=4): return f"v[{a}:{a+n-1}]"

DEF = dict(prof=0, ln_mimic=1, score_mimic=0, nt="nt", pf=1, h1fast=1, fastn=12, hold=0, henc=-1,
           bgo=0,
           nearly=1,
           ukpf=1,
           h1touch=1,
           h2early=1,
           cleanpos=0,
           glu=1,
           bpf=0)

def gen(**kw):
    o = dict(DEF); o.update(kw)
    prof, nt = o['prof'], o['nt']
    A = Asm(); I = A.I; L = A.L; C = A.C
    def TS(k):
        if prof or o['henc'] == k: I(f"s_memrealtime s[{64+2*k}:{65+2*k}]")
    def exec_set(lo, hi):
        I(f"s_mov_b32 exec_lo, {lo:#x}\ns_mov_b32 exec_hi, {hi:#x}")
    def exec_all(): I("s_mov_b64 exec, -1")
    def swap_red(op, v, t, which):
        I(f"v_mov_b32 v{t}, v{v}\nv_permlane{which}_swap_b32 v{v}, v{t}\n{op} v{v}, v{v}, v{t}")
    def dpp(op, v, ctl): I(f"{op}_dpp v{v}, v{v}, v{v} {ctl} row_mask:0xf bank_mask:0xf")
    def mfma(d, a, b, first): I(f"v_mfma_f32_16x16x32_bf16 {vr(d)}, {vr(a)}, {vr(b)}, {'0' if first else vr(d)}")
    WS, SX, SW, SK, SV = "s[44:47]", "s[48:51]", "s[52:55]", "s[56:59]", "s[60:63]"
    XS, XC, WR, UK = 8, 16, 24, 88
    SEL, F, T0, T1, T2, T3, AOP, ACC, G = 104, 112, 128, 129, 130, 131, 132, 140, 144

    def gemv_addr(rs):
        I(f"""v_lshrrev_b32 v8, 3, v3
v_lshlrev_b32 v8, 10, v8
v_lshl_add_u32 v5, v2, 5, v8
v_and_b32 v9, 7, v1
v_lshl_add_u32 v9, v2, 3, v9
v_lshl_add_u32 v4, v9, 4, v8
v_mul_u32_u24 v6, {16*rs}, v2
v_lshl_add_u32 v6, v3, 4, v6""")
    def gemv_loads(rs):
        I(f"buffer_load_dwordx4 {vr(XS)}, v4, {SX}, 0 offen\nbuffer_load_dwordx4 {vr(XS+4)}, v4, {SX}, 0 offen offset:512")
        I(f"buffer_load_dwordx4 {vr(XC)}, v5, {SX}, s12 offen\nbuffer_load_dwordx4 {vr(XC+4)}, v5, {SX}, s12 offen offset:16")
        for n in range(16):
            I(f"buffer_load_dwordx4 {vr(WR+4*n)}, v6, {SW}, s11 offen {nt}")
            if n < 15: I(f"s_add_u32 s11, s11, {rs}")
    def gemv_compute(extra, hook, stamps):
        I(f"""v_and_b32 v{T0}, 1, v1
v_lshlrev_b32 v{T0}, 4, v{T0}
v_mov_b32 v{T1}, 0x0c0c0100
v_mov_b32 v{T2}, 0x0c0c0302
v_alignbit_b32 v{T1}, v{T1}, v{T1}, v{T0}
v_alignbit_b32 v{T2}, v{T2}, v{T2}, v{T0}
v_bfe_u32 v{T0}, v1, 1, 2
v_mov_b32 v{T3}, 0x0c0c0c0c""")
        for r in range(4):
            I(f"v_cmp_eq_u32 vcc, {r}, v{T0}\nv_cndmask_b32 v{SEL+2*r}, v{T3}, v{T1}, vcc\nv_cndmask_b32 v{SEL+2*r+1}, v{T3}, v{T2}, vcc")
        I(f"v_lshlrev_b32 v4, 4, v1")
        I(f"s_mov_b32 s15, 0xffff0000\nv_mov_b32 v{T3}, 0x3f803f80\nv_mov_b32 v{T0}, 0")
        I(f"s_waitcnt vmcnt({18+extra})")
        hook(1)
        if stamps: TS(2)
        for i in range(8): I(f"v_dot2_f32_bf16 v{T0}, v{XS+i}, v{T3}, v{T0}")
        def unp(dst, src, i):
            I(f"v_lshlrev_b32 v{dst+2*i}, 16, v{src+i}\nv_and_b32 v{dst+2*i+1}, s15, v{src+i}")
        unp(F, XS, 0); unp(F, XS, 1)
        dpp("v_add_f32", T0, "quad_perm:[1,0,3,2]"); unp(F, XS, 2)
        dpp("v_add_f32", T0, "quad_perm:[2,3,0,1]"); unp(F, XS, 3)
        dpp("v_add_f32", T0, "row_half_mirror")
        I(f"v_mov_b32 v{T1}, v{T0}"); unp(F, XS, 4)
        I(f"v_permlane16_swap_b32 v{T0}, v{T1}\nv_add_f32 v{T0}, v{T0}, v{T1}\nv_mov_b32 v{T1}, v{T0}"); unp(F, XS, 5)
        I(f"v_permlane32_swap_b32 v{T0}, v{T1}\nv_add_f32 v{T0}, v{T0}, v{T1}")
        unp(F, XS, 6); unp(F, XS, 7)
        I(f"v_mul_f32 v{T0}, {f32(-1.0/512)}, v{T0}")
        I(f"v_mov_b32 v{T1}, v{T0}")
        for i in range(8): I(f"v_pk_add_f32 v[{F+2*i}:{F+2*i+1}], v[{F+2*i}:{F+2*i+1}], v[{T0}:{T1}]")
        I(f"v_pk_mul_f32 v[{T2}:{T3}], v[{F}:{F+1}], v[{F}:{F+1}]")
        for i in range(1, 8): I(f"v_pk_fma_f32 v[{T2}:{T3}], v[{F+2*i}:{F+2*i+1}], v[{F+2*i}:{F+2*i+1}], v[{T2}:{T3}]")
        I(f"v_add_f32 v{T2}, v{T2}, v{T3}")
        I(f"s_waitcnt vmcnt({16+extra})")
        unp(G, XC, 0)
        dpp("v_add_f32", T2, "quad_perm:[1,0,3,2]"); unp(G, XC, 1)
        dpp("v_add_f32", T2, "quad_perm:[2,3,0,1]"); unp(G, XC, 2)
        dpp("v_add_f32", T2, "row_half_mirror")
        I(f"v_mov_b32 v{T3}, v{T2}"); unp(G, XC, 3)
        I(f"v_permlane16_swap_b32 v{T2}, v{T3}\nv_add_f32 v{T2}, v{T2}, v{T3}\nv_mov_b32 v{T3}, v{T2}"); unp(G, XC, 4)
        I(f"v_permlane32_swap_b32 v{T2}, v{T3}\nv_add_f32 v{T2}, v{T2}, v{T3}")
        I(f"v_mul_f32 v{T2}, {f32(1.0/512)}, v{T2}")
        I(f"v_cvt_pk_bf16_f32 v{T3}, v{T0}, v{T2}")
        unp(G, XC, 5)
        I(f"v_lshlrev_b32 v{T0}, 16, v{T3}\nv_and_b32 v{T2}, s15, v{T3}")
        I(f"v_add_f32 v{T2}, {f32(1e-5)}, v{T2}\nv_cvt_pk_bf16_f32 v{T2}, v{T2}, v{T2}\nv_and_b32 v{T2}, s15, v{T2}\nv_sqrt_f32 v{T2}, v{T2}")
        unp(G, XC, 6)
        I(f"v_cvt_pk_bf16_f32 v{T2}, v{T2}, v{T2}\nv_and_b32 v{T2}, s15, v{T2}\nv_rcp_f32 v{T2}, v{T2}")
        unp(G, XC, 7)
        I(f"v_mov_b32 v{T1}, v{T0}\nv_mov_b32 v{T3}, v{T2}")
        XP = XS
        for i in range(8):
            p = f"v[{G+2*i}:{G+2*i+1}]"
            I(f"v_pk_add_f32 {p}, {p}, v[{T0}:{T1}]")
            if o['ln_mimic']:
                I(f"v_cvt_pk_bf16_f32 v{XP+i}, v{G+2*i}, v{G+2*i+1}")
                unp(G, XP, i)
            I(f"v_pk_mul_f32 {p}, {p}, v[{T2}:{T3}]")
            I(f"v_cvt_pk_bf16_f32 v{XP+i}, v{G+2*i}, v{G+2*i+1}")
        hook(2)
        if stamps: TS(3)
        def aop(n):
            for r in range(4): I(f"v_perm_b32 v{AOP+4*(n%2)+r}, v{XP+n//2}, v{XP+n//2}, v{SEL+2*r+(n%2)}")
        aop(0)
        for n in range(16):
            if n < 15: aop(n + 1)
            I(f"s_waitcnt vmcnt({extra+15-n})")
            mfma(ACC, AOP + 4 * (n % 2), WR + 4 * n, n == 0)
        I(f"s_mov_b32 s15, 0xffffff00\nv_mov_b32 v{T0}, s43")
        for r in range(4): I(f"v_and_or_b32 v{ACC+r}, v{ACC+r}, s15, v{T0}")

    TS(0)
    if o['hold']: I("s_memrealtime s[92:93]")
    I("s_load_dwordx16 s[16:31], s[0:1], 0\ns_load_dwordx8 s[32:39], s[0:1], 64\ns_load_dwordx2 s[40:41], s[0:1], 96")
    I("s_cmp_ge_u32 s2, 256\ns_cbranch_scc1 L_end")
    I("v_lshrrev_b32 v4, 6, v0\nv_and_b32 v1, 63, v0\nv_readfirstlane_b32 s3, v4\nv_lshrrev_b32 v2, 4, v1\nv_and_b32 v3, 15, v1")
    I(f"s_mov_b32 s46, {WSSZ:#x}\ns_mov_b32 s47, 0x20000\ns_mov_b32 s50, 2048\ns_mov_b32 s51, 0x20000\ns_mov_b32 s54, 0x400000\ns_mov_b32 s55, 0x20000\ns_mov_b32 s59, 0x20000\ns_mov_b32 s63, 0x20000")
    if prof:
        for k in range(1, 16): I(f"s_mov_b32 s{64+2*k}, 0")
    I("s_and_b32 s4, s2, 7\ns_lshr_b32 s5, s2, 3\ns_lshl_b32 s6, s4, 2\ns_bfe_u32 s15, s5, 0x20002\ns_add_u32 s6, s6, s15\ns_and_b32 s7, s5, 3")
    I("s_cmp_lg_u32 s3, 0\ns_cbranch_scc1 L_not0")
    I(f"""s_lshr_b32 s12, s5, 4
s_lshl_b32 s12, s12, 2
s_add_u32 s12, s12, s7
s_lshl_b32 s13, s6, 3
s_add_u32 s13, s13, s12
s_lshl_b32 s13, s13, 10
s_lshl_b32 s11, s12, 19
s_lshl_b32 s15, s6, 8
s_add_u32 s11, s11, s15
s_lshl_b32 s12, s12, 7""")
    gemv_addr(8192)
    I("s_waitcnt lgkmcnt(0)\ns_mov_b64 s[48:49], s[16:17]\ns_mov_b64 s[52:53], s[20:21]")
    gemv_loads(8192)
    I("s_branch L_c1")
    L("L_not0")
    if o['pf']:
        I("s_cmp_lg_u32 s3, 7\ns_cbranch_scc1 L_nopf\ns_getpc_b64 s[8:9]")
        L("L_pc")
        I("v_lshlrev_b32 v4, 6, v1")
        for i in range(3):
            I(f"v_min_u32 v5, L_end-L_pc, v4\nglobal_load_dword v{233+i}, v5, s[8:9]\nv_add_u32 v4, 0x1000, v4")
        L("L_nopf")
    I("s_waitcnt lgkmcnt(0)\ns_mov_b64 s[48:49], s[16:17]\ns_mov_b64 s[52:53], s[20:21]")
    L("L_c1")
    I(f"s_mov_b64 s[44:45], s[40:41]\ns_load_dword s42, s[40:41], {O_EP}")
    TS(1)
    I("s_cmp_ge_u32 s2, 128\ns_cbranch_scc1 L_B0")
    I("s_mov_b64 s[56:57], s[22:23]\ns_mov_b32 s58, 0x400000\ns_mov_b64 s[60:61], s[24:25]\ns_mov_b32 s62, 0x400000\ns_lshr_b32 s8, s7, 1\ns_and_b32 s9, s7, 1")
    I(f"""v_xor_b32 v7, v3, v2
v_lshlrev_b32 v7, 4, v7
v_lshl_add_u32 v7, v2, 13, v7
s_lshl_b32 s15, s7, 3
s_add_u32 s15, s15, s3
s_lshl_b32 s15, s15, 17
s_lshl_b32 s11, s6, 8
s_add_u32 s15, s15, s11
s_lshl_b32 s11, s3, 13
s_barrier""")
    if o['h1touch']:
        I(f"s_cmp_lg_u32 s3, 4\ns_cbranch_scc1 L_Hnt\nv_lshlrev_b32 v4, 6, v1\ns_lshl_b32 s10, s6, 13\ns_add_u32 s10, s10, {O_H1 if o['h1fast'] else O_H1B:#x}\nbuffer_load_dword v237, v4, {WS}, s10 offen sc1\ns_add_u32 s10, s10, 4096\nbuffer_load_dword v236, v4, {WS}, s10 offen sc1\nL_Hnt:")
    for n in range(4):
        I(f"s_mov_b32 m0, s11\ns_add_u32 s11, s11, 1024\nbuffer_load_dwordx4 v7, {SK}, s15 offen {nt} lds\ns_add_u32 s15, s15, 0x8000")
        if n < 3: I(f"v_xor_b32 v7, {64*(n ^ (n+1))}, v7")
    I("s_waitcnt lgkmcnt(0)\ns_add_u32 s42, s42, 1\ns_and_b32 s43, s42, 0xff")
    I("s_cmp_eq_u32 s3, 0\ns_cbranch_scc1 L_A1\ns_cmp_ge_u32 s3, 4\ns_cbranch_scc1 L_Hpoll1\ns_waitcnt vmcnt(0)")
    TS(3)
    I("s_branch L_Hb2")
    L("L_B0")
    I(f"""s_mov_b32 s96, s6
s_mov_b32 s97, s7
s_bfe_u32 s8, s5, 0x30001
s_lshr_b32 s6, s4, 2
s_and_b32 s7, s4, 3
s_lshl_b32 s7, s7, 3
s_add_u32 s7, s7, s8
s_and_b32 s8, s5, 1
s_lshl_b32 s5, s8, 2
s_xor_b32 s5, s5, s3
s_lshl_b32 s10, s6, 5
s_add_u32 s10, s10, s7
s_lshl_b32 s10, s10, 3
s_add_u32 s10, s10, s5
s_lshl_b32 s10, s10, 14
s_mul_i32 s9, s5, {16*CKS}
s_mov_b32 s14, s9
v_lshlrev_b32 v7, 4, v1
s_mov_b64 s[60:61], s[18:19]
s_mov_b32 s62, 0x800000
s_mov_b64 s[56:57], s[36:37]
s_mov_b32 s58, 2048""")
    def ckdma(cnt):
        for n in range(cnt):
            I(f"s_mov_b32 m0, s14\ns_add_u32 s14, s14, {CKS}\nbuffer_load_dwordx4 v7, {SV}, s10 offen {nt} lds\ns_add_u32 s10, s10, 1024")
    def clean(wb):
        I(f"""v_lshrrev_b32 v16, 5, v1
v_lshlrev_b32 v16, 15, v16
v_and_b32 v17, 31, v1
v_lshl_add_u32 v16, v17, 4, v16
s_lshl_b32 s98, s8, 2
s_add_u32 s98, s98, s3
s_sub_u32 s98, s98, {wb}
s_lshl_b32 s98, s98, 18
s_lshl_b32 s99, s6, 14
s_add_u32 s98, s98, s99
s_lshl_b32 s99, s7, 9
s_add_u32 s98, s98, s99
s_add_u32 s98, s98, {O_H3:#x}
v_mov_b32 v12, -1
v_mov_b32 v13, -1
v_mov_b32 v14, -1
v_mov_b32 v15, -1""")
        for n in range(4):
            I(f"buffer_store_dwordx4 v[12:15], v16, {WS}, s98 offen sc1\ns_add_u32 s98, s98, 0x10000")
    I("s_cmp_lg_u32 s3, 0\ns_cbranch_scc1 L_B1")
    if o['bgo'] == 0: I("s_barrier")
    ckdma(4)
    I("s_waitcnt lgkmcnt(0)\ns_add_u32 s42, s42, 1\ns_and_b32 s43, s42, 0xff")
    L("L_A1")
    cnt = [0]
    def hookA(k):
        if o['bgo'] == k:
            I(f"s_cmp_lt_u32 s2, 128\ns_cbranch_scc1 L_A1h\ns_barrier\nL_A1h:")
    gemv_compute(4, hookA, True)
    I(f"s_add_u32 s12, s13, {O_H1:#x}\ns_add_u32 s13, s13, {O_H1B:#x}")
    if o['h1fast']: I(f"buffer_store_dwordx4 {vr(ACC)}, v4, {WS}, s12 offen")
    I(f"buffer_store_dwordx4 {vr(ACC)}, v4, {WS}, s13 offen sc1")
    TS(4)
    I("s_cmp_ge_u32 s2, 128\ns_cbranch_scc1 L_B0b")
    I(f"s_waitcnt vmcnt({2 if o['h1fast'] else 1})\ns_branch L_Hb2")

    L("L_Hpoll1")
    if o['cleanpos'] == 2:
        I(f"""s_lshl_b32 s15, s6, 2
s_add_u32 s15, s15, s7
s_lshl_b32 s15, s15, 2
s_add_u32 s15, s15, s3
s_sub_u32 s15, s15, 4
s_lshl_b32 s15, s15, 12
s_add_u32 s15, s15, {O_H3:#x}
v_lshlrev_b32 v4, 4, v1
v_mov_b32 v8, -1
v_mov_b32 v9, -1
v_mov_b32 v10, -1
v_mov_b32 v11, -1""")
        for n in range(4): I(f"buffer_store_dwordx4 v[8:11], v4, {WS}, s15 offen offset:{1024*n} sc1")
    I(f"""v_subrev_u32 v5, 256, v0
v_lshlrev_b32 v4, 2, v5
s_lshl_b32 s10, s6, 13
s_add_u32 s10, s10, {O_H1 if o['h1fast'] else O_H1B:#x}
s_add_u32 s11, s10, 4096
v_lshrrev_b32 v6, 7, v5
v_mul_u32_u24 v6, 320, v6
v_bfe_u32 v12, v5, 2, 4
v_lshl_add_u32 v6, v12, 4, v6
v_bfe_u32 v12, v5, 6, 1
v_lshl_add_u32 v6, v12, 3, v6
v_and_b32 v5, 3, v5
v_lshl_add_u32 v5, v5, 1, v6
v_add_u32 v5, {L_QB}, v5
s_mov_b32 s12, 0""")
    L("L_Hpoll1l")
    for p in range(8):
        I(f"buffer_load_dword v{12+p}, v4, {WS}, s{10+p//4} offen offset:{1024*(p%4)} sc1")
    I("s_add_u32 s12, s12, 1")
    if o['h1fast']:
        I(f"s_cmp_eq_u32 s12, {o['fastn']}\ns_cselect_b32 s15, {O_H1B-O_H1:#x}, 0\ns_add_u32 s10, s10, s15\ns_add_u32 s11, s11, s15")
    I("s_waitcnt vmcnt(0)")
    I("v_xor_b32 v20, s43, v12")
    for p in range(1, 8): I(f"v_bitop3_b32 v20, v20, v{12+p}, s43 bitop3:0xf6")
    I(f"v_and_b32 v20, 0xff, v20\nv_cmp_ne_u32 vcc, 0, v20\ns_cmp_gt_u32 s12, {SPIN}\ns_cbranch_scc1 L_Hpoll1d\ns_cbranch_vccnz L_Hpoll1l")
    L("L_Hpoll1d")
    TS(5)
    if prof: I("s_mov_b32 s88, s12")
    I("v_add_f32 v12, v12, v13\nv_add_f32 v14, v14, v15\nv_add_f32 v16, v16, v17\nv_add_f32 v18, v18, v19\nv_add_f32 v12, v12, v14\nv_add_f32 v16, v16, v18\nv_add_f32 v12, v12, v16")
    I("v_cvt_pk_bf16_f32 v12, v12, v12\nds_write_b16 v5, v12")
    L("L_Hb2")
    QO = 8
    I(f"""v_xor_b32 v6, v2, v3
v_lshlrev_b32 v6, 4, v6
v_lshl_add_u32 v6, v3, 8, v6
s_lshl_b32 s11, s3, 13
v_add_u32 v6, s11, v6""")
    for ks in range(4):
        I(f"ds_read_b128 {vr(UK+4*ks)}, v6")
        if ks < 3: I(f"v_xor_b32 v6, {64*(ks ^ (ks+1))}, v6")
    I(f"v_bfe_u32 v4, v3, 2, 1\nv_mul_u32_u24 v4, 320, v4\nv_lshl_add_u32 v4, v2, 4, v4\nv_add_u32 v4, {L_QB}, v4")
    I(f"v_lshlrev_b32 v5, 16, v2\nv_lshl_add_u32 v5, v3, 2, v5\ns_lshl_b32 s10, s6, 11\ns_lshl_b32 s11, s7, 9\ns_add_u32 s10, s10, s11\ns_lshl_b32 s11, s3, 6\ns_add_u32 s10, s10, s11\ns_add_u32 s10, s10, {O_H2:#x}")
    I("s_and_b32 s11, s42, 0xffff\nv_mov_b32 v29, s11\ns_mov_b32 s11, 0xffff0000")
    I("s_waitcnt lgkmcnt(0)\ns_barrier")
    for ks in range(4): I(f"ds_read_b128 {vr(QO+4*ks)}, v4 offset:{64*ks}")
    for ks in range(4):
        I(f"s_waitcnt lgkmcnt({3-ks})")
        mfma(24, QO + 4 * ks, UK + 4 * ks, ks == 0)
    exec_set(0xffffffff, 0)
    I("v_cvt_pk_bf16_f32 v28, v24, v24\nv_and_or_b32 v28, v28, s11, v29")
    I(f"buffer_store_dword v28, v5, {WS}, s10 offen sc1")
    exec_all()
    TS(6)
    if not o['glu']: I("s_branch L_Hng")
    I("s_and_b32 s15, s3, 6\ns_cmp_eq_u32 s15, 4\ns_cbranch_scc0 L_Hng")
    I(f"""s_and_b32 s14, s3, 1
s_lshl_b32 s14, s14, 7
s_add_u32 s14, s14, s2
s_cmp_ge_u32 s14, 176
s_cbranch_scc1 L_Hng
s_setprio 3
s_lshl_b32 s98, s14, 10
s_add_u32 s98, s98, {O_HG:#x}
s_cmp_ge_u32 s14, 88
s_cselect_b64 s[52:53], s[32:33], s[30:31]
s_cselect_b32 s15, 88, 0
s_sub_u32 s15, s14, s15
s_and_b32 s12, s15, 7
s_mul_i32 s11, s12, {64*2752}
s_lshl_b32 s12, s12, 7
s_lshr_b32 s15, s15, 3
s_lshl_b32 s15, s15, 8
s_add_u32 s11, s11, s15
s_mov_b32 s54, {GUSZ}""")
    gemv_addr(2752)
    gemv_loads(2752)
    gemv_compute(0, lambda k: None, False)
    I(f"buffer_store_dwordx4 {vr(ACC)}, v4, {WS}, s98 offen sc1\ns_setprio 0")
    TS(2)
    L("L_Hng")
    C("C weights -> LDS; half of the waves take w_uv, the other half w_o")
    DV = 160
    I(f"s_mov_b64 s[56:57], s[26:27]")
    I(f"""v_lshrrev_b32 v{DV+4}, 5, v1
v_and_b32 v{DV+5}, 31, v1
v_lshlrev_b32 v{DV}, 1, v{DV+4}
v_xor_b32 v{DV+5}, v{DV+5}, v{DV}
v_lshlrev_b32 v{DV+4}, 10, v{DV+4}
v_lshl_add_u32 v{DV}, v{DV+5}, 4, v{DV+4}
v_xor_b32 v{DV+1}, 0x40, v{DV}
v_xor_b32 v{DV+2}, 0x80, v{DV}
v_xor_b32 v{DV+3}, 0xc0, v{DV}""")
    I("s_lshl_b32 s14, s6, 1\ns_add_u32 s14, s14, s8")
    if not o['glu']: I("s_branch L_Hdn")
    I("s_cmp_ge_u32 s14, 43\ns_cbranch_scc1 L_Hdn\ns_cmp_lt_u32 s3, 6\ns_cbranch_scc1 L_Hdn")
    I(f"s_mov_b64 s[52:53], s[34:35]\ns_mov_b32 s54, {GUSZ}\ns_and_b32 s13, s3, 1")
    I(f"s_lshl_b32 s10, s14, 1\ns_add_u32 s10, s10, s13\ns_lshl_b32 s10, s10, 14\ns_lshl_b32 s11, s9, 9\ns_add_u32 s10, s10, s11\ns_lshl_b32 s11, s13, 13\ns_add_u32 s11, s11, {L_DN}")
    for n in range(8):
        I(f"s_mov_b32 m0, s11\ns_add_u32 s11, s11, 1024\nbuffer_load_dwordx4 v{DV+n%4}, {SW}, s10 offen {nt} lds\ns_add_u32 s10, s10, 2048")
    L("L_Hdn")
    I("s_xor_b32 s15, s8, s9\ns_lshr_b32 s12, s3, 2\ns_and_b32 s13, s3, 3\ns_cmp_eq_u32 s15, s12\ns_cbranch_scc0 L_Hwo")
    I(f"""v_and_b32 v{DV+4}, 1, v2
v_lshlrev_b32 v{DV+4}, 1, v{DV+4}
v_xor_b32 v{DV+4}, v{DV+4}, v3
v_lshlrev_b32 v{DV+5}, 13, v2
v_lshl_add_u32 v{DV+4}, v{DV+4}, 4, v{DV+5}
s_lshl_b32 s10, s8, 2
s_add_u32 s10, s10, s13
s_lshl_b32 s10, s10, 19
s_lshl_b32 s11, s6, 8
s_add_u32 s10, s10, s11
s_lshl_b32 s11, s13, 14
s_add_u32 s11, s11, {L_UV}""")
    for n in range(16):
        I(f"s_mov_b32 m0, s11\ns_add_u32 s11, s11, 1024\nbuffer_load_dwordx4 v{DV+4}, {SV}, s10 offen {nt} lds\ns_add_u32 s10, s10, 0x8000")
        if n % 4 == 3 and n < 15: I(f"v_xor_b32 v{DV+4}, {64*((n//4) ^ (n//4+1))}, v{DV+4}")
    I("s_branch L_Hg2")
    L("L_Hwo")
    I(f"s_lshl_b32 s10, s6, 2\ns_add_u32 s10, s10, s13\ns_lshl_b32 s10, s10, 15\ns_lshl_b32 s11, s9, 9\ns_add_u32 s10, s10, s11\ns_lshl_b32 s11, s13, 14\ns_add_u32 s11, s11, {L_WO}")
    for n in range(16):
        I(f"s_mov_b32 m0, s11\ns_add_u32 s11, s11, 1024\nbuffer_load_dwordx4 v{DV+n%4}, {SK}, s10 offen {nt} lds\ns_add_u32 s10, s10, 2048")
    L("L_Hg2")
    if not o['glu']: I("s_branch L_Hnodn")
    I("s_cmp_ge_u32 s14, 43\ns_cbranch_scc1 L_Hnodn\ns_cmp_eq_u32 s3, 4\ns_cbranch_scc0 L_Hnodn")
    I(f"""v_lshlrev_b32 v4, 8, v2
v_lshl_add_u32 v4, v3, 2, v4
s_lshr_b32 s10, s14, 2
s_lshl_b32 s10, s10, 13
s_and_b32 s11, s14, 3
s_lshl_b32 s11, s11, 6
s_add_u32 s10, s10, s11
s_add_u32 s10, s10, {O_HG:#x}
s_add_u32 s11, s10, 4096
s_add_u32 s12, s10, {88*1024}
s_add_u32 s13, s12, 4096
v_bfe_u32 v5, v1, 2, 1
v_lshlrev_b32 v5, 4, v5
v_bfe_u32 v14, v1, 4, 1
v_lshl_add_u32 v5, v14, 3, v5
v_bfe_u32 v14, v1, 3, 1
v_lshl_add_u32 v5, v14, 2, v5
v_and_b32 v14, 3, v1
v_add_u32 v5, v5, v14
v_lshlrev_b32 v5, 1, v5
v_lshrrev_b32 v14, 5, v1
v_lshl_add_u32 v5, v14, 7, v5
v_add_u32 v5, {L_HB}, v5
s_mov_b32 s15, 0""")
    L("L_HpollG")
    for p in range(16):
        I(f"buffer_load_dword v{16+p}, v4, {WS}, s{10+p//4} offen offset:{1024*(p%4)} sc1")
    I("s_add_u32 s15, s15, 1\ns_waitcnt vmcnt(0)")
    I("v_xor_b32 v32, s43, v16")
    for p in range(1, 16): I(f"v_bitop3_b32 v32, v32, v{16+p}, s43 bitop3:0xf6")
    I(f"v_and_b32 v32, 0xff, v32\nv_cmp_ne_u32 vcc, 0, v32\ns_cmp_gt_u32 s15, {SPIN}\ns_cbranch_scc1 L_HpollGd\ns_cbranch_vccnz L_HpollG")
    L("L_HpollGd")
    if prof: I("s_mov_b32 s92, s15")
    for b0 in (16, 24):
        I(f"v_add_f32 v{b0}, v{b0}, v{b0+1}\nv_add_f32 v{b0+2}, v{b0+2}, v{b0+3}\nv_add_f32 v{b0+4}, v{b0+4}, v{b0+5}\nv_add_f32 v{b0+6}, v{b0+6}, v{b0+7}\nv_add_f32 v{b0}, v{b0}, v{b0+2}\nv_add_f32 v{b0+4}, v{b0+4}, v{b0+6}\nv_add_f32 v{b0}, v{b0}, v{b0+4}")
    I(f"""v_cvt_pk_bf16_f32 v16, v16, v24
v_and_b32 v24, 0xffff0000, v16
v_lshlrev_b32 v16, 16, v16
v_mul_f32 v16, {f32(-math.log2(math.e))}, v16
v_exp_f32 v16, v16
v_add_f32 v16, 1.0, v16
v_rcp_f32 v16, v16
v_cvt_pk_bf16_f32 v16, v16, v16
v_lshlrev_b32 v16, 16, v16
v_mul_f32 v16, v16, v24
v_cvt_pk_bf16_f32 v16, v16, v16
ds_write_b16 v5, v16""")
    L("L_Hnodn")
    UVO, WOO, DNO, OA, HO = 32, 64, 96, 104, 112
    TA = 150
    I(f"""v_bfe_u32 v4, v1, 2, 2
v_and_b32 v6, 3, v1
v_and_b32 v5, 1, v2
v_lshl_add_u32 v5, v4, 1, v5
v_xor_b32 v{TA}, s3, v5
v_lshlrev_b32 v{TA}, 5, v{TA}
v_lshl_add_u32 v{TA}, v4, 12, v{TA}
v_lshl_add_u32 v{TA}, v2, 8, v{TA}
v_lshl_add_u32 v{TA}, v6, 3, v{TA}
v_lshrrev_b32 v4, 2, v1
v_and_b32 v5, 7, v4
s_lshl_b32 s10, s3, 1
v_xor_b32 v{TA+1}, s10, v5
v_lshlrev_b32 v{TA+1}, 5, v{TA+1}
v_lshl_add_u32 v{TA+1}, v4, 9, v{TA+1}
v_lshl_add_u32 v{TA+1}, v6, 3, v{TA+1}
v_add_u32 v{TA+1}, {L_WO}, v{TA+1}
v_xor_b32 v{TA+2}, 32, v{TA+1}
v_add_u32 v{TA+3}, {L_DN-L_WO}, v{TA+1}
v_add_u32 v{TA+4}, {L_DN-L_WO}, v{TA+2}
v_bfe_u32 v{TA+5}, v3, 2, 1
v_lshlrev_b32 v{TA+5}, 7, v{TA+5}
v_lshl_add_u32 v{TA+5}, v2, 4, v{TA+5}
v_add_u32 v{TA+5}, {L_HB}, v{TA+5}""")
    for r in range(8): I(f"v_mov_b32 v{OA+r}, 0")
    I(f"""v_lshlrev_b32 v4, 11, v2
v_lshl_add_u32 v4, v3, 4, v4
s_lshl_b32 s10, s14, 15
s_bfe_u32 s11, s3, 0x10001
s_lshl_b32 s12, s11, 14
s_add_u32 s10, s10, s12
s_lshr_b32 s12, s3, 2
s_lshl_b32 s13, s12, 13
s_add_u32 s10, s10, s13
s_and_b32 s13, s3, 1
s_lshl_b32 s15, s13, 8
s_add_u32 s10, s10, s15
s_add_u32 s10, s10, {O_H3:#x}""")
    I(f"""s_lshl_b32 s15, s11, 1
s_add_u32 s15, s15, s12
s_lshl_b32 s15, s15, 6
s_add_u32 s15, s15, {L_CF}
v_lshl_add_u32 v5, v2, 4, s15
s_lshl_b32 s15, s11, 2
s_add_u32 s15, s15, {L_CF+256}
v_mov_b32 v6, s15""")
    I(f"""s_lshl_b32 s15, s12, 1
s_add_u32 s15, s15, s11
s_mul_i32 s15, s15, 576
s_lshl_b32 s13, s13, 8
s_add_u32 s15, s15, s13
s_add_u32 s15, s15, {L_CC}
v_lshlrev_b32 v7, 4, v3
v_lshl_add_u32 v7, v2, 3, v7
v_add_u32 v7, s15, v7""")
    I(f"v_and_b32 v12, 1, v3\nv_lshlrev_b32 v12, 4, v12\nv_mov_b32 v13, 0xffff\nv_lshlrev_b32 v12, v12, v13\nv_lshrrev_b32 v13, 1, v3")
    for r in range(4):
        I(f"v_cmp_eq_u32 vcc, {r}, v13\nv_cndmask_b32 v{8+r}, 0, v12, vcc")
    I(f"""v_and_b32 v12, 3, v3
v_mul_u32_u24 v12, 576, v12
v_lshl_add_u32 v12, v2, 4, v12
v_add_u32 v12, {L_CC}, v12
v_and_b32 v13, 1, v3
v_mul_u32_u24 v13, 320, v13
v_lshl_add_u32 v13, v2, 4, v13
s_lshr_b32 s15, s3, 1
s_lshl_b32 s15, s15, 6
s_and_b32 s13, s3, 1
s_lshl_b32 s13, s13, 3
s_add_u32 s15, s15, s13
s_add_u32 s15, s15, {L_CX}
v_add_u32 v13, s15, v13
v_bfe_u32 v14, v3, 2, 1
v_mul_u32_u24 v14, 320, v14
v_lshl_add_u32 v14, v2, 4, v14
v_add_u32 v14, {L_CX}, v14""")
    I(f"""v_lshlrev_b32 v15, 17, v2
v_lshl_add_u32 v15, v3, 3, v15
s_lshl_b32 s11, s9, 3
s_add_u32 s11, s11, s3
s_lshl_b32 s11, s11, 13
s_lshl_b32 s13, s14, 7
s_add_u32 s11, s11, s13
s_add_u32 s11, s11, {O_H5:#x}""")
    I("s_waitcnt vmcnt(0) lgkmcnt(0)")
    TS(7)
    I("s_cmp_eq_u32 s3, 0\ns_cbranch_scc0 L_Hb4")
    I(f"""v_lshlrev_b32 v16, 9, v1
s_lshr_b32 s13, s6, 4
s_lshl_b32 s13, s13, 8
s_and_b32 s15, s6, 15
s_lshl_b32 s15, s15, 4
s_add_u32 s13, s13, s15
s_add_u32 s13, s13, {O_ST:#x}
s_mov_b32 s15, 0""")
    L("L_HpollS")
    I(f"""buffer_load_dwordx4 v[20:23], v16, {WS}, s13 offen sc1
s_add_u32 s15, s15, 1
s_waitcnt vmcnt(0)
v_xor_b32 v17, s42, v21
v_bitop3_b32 v17, v17, v23, s42 bitop3:0xf6
v_cmp_ne_u32 vcc, 0, v17
s_cmp_gt_u32 s15, {SPIN}
s_cbranch_scc1 L_HpollSd
s_cbranch_vccnz L_HpollS""")
    L("L_HpollSd")
    TS(8)
    L("L_Hb4")
    I("s_barrier")
    TS(9)
    PL = 116
    def payload():
        for n in range(4): I(f"buffer_load_dwordx4 {vr(PL+4*n)}, v4, {WS}, s10 offen offset:{512*n} sc1")
    payload()
    def trreads():
        for ks in range(8):
            for t in range(2):
                I(f"ds_read_b64_tr_b16 v[{UVO+4*ks+2*t}:{UVO+4*ks+2*t+1}], v{TA} offset:{(64*(ks//2)+8*t+4*(ks%2))*256}")
        for tau in range(2):
            for ks in range(4):
                for t in range(2):
                    oo = WOO + 16 * tau + 4 * ks + 2 * t
                    I(f"ds_read_b64_tr_b16 v[{oo}:{oo+1}], v{TA+1+tau} offset:{(32*ks+16*t)*512}")
    I("s_cmp_eq_u32 s3, 0\ns_cbranch_scc0 L_Hb5")
    I("v_mov_b32 v17, v20")
    for ctl in ("quad_perm:[1,0,3,2]", "quad_perm:[2,3,0,1]", "row_half_mirror", "row_mirror"): dpp("v_max_f32", 17, ctl)
    swap_red("v_max_f32", 17, 18, 16)
    I("v_sub_f32 v17, v20, v17\nv_exp_f32 v17, v17\nv_cvt_pk_bf16_f32 v17, v17, v17\nv_and_b32 v18, 0xffff0000, v17\nv_mul_f32 v18, v18, v22")
    I(f"v_lshlrev_b32 v19, 2, v1\nv_add_u32 v19, {L_CF}, v19\nds_write_b32 v19, v17")
    for ctl in ("quad_perm:[1,0,3,2]", "quad_perm:[2,3,0,1]", "row_half_mirror", "row_mirror"): dpp("v_add_f32", 18, ctl)
    swap_red("v_add_f32", 18, 17, 16)
    I(f"v_rcp_f32 v18, v18\nv_lshrrev_b32 v19, 5, v1\nv_lshlrev_b32 v19, 2, v19\nv_add_u32 v19, {L_CF+256}, v19\nds_write_b32 v19, v18\ns_waitcnt lgkmcnt(0)\ns_barrier")
    L("L_Hb5")
    trreads()
    if not o['glu']: I("s_branch L_Hnodn2")
    I("s_cmp_ge_u32 s14, 43\ns_cbranch_scc1 L_Hnodn2")
    for tau in range(2):
        for t in range(2):
            oo = DNO + 4 * tau + 2 * t
            I(f"ds_read_b64_tr_b16 v[{oo}:{oo+1}], v{TA+3+tau} offset:{16*t*512}")
    I(f"ds_read_b128 {vr(HO)}, v{TA+5}\ns_waitcnt lgkmcnt(0)")
    for tau in range(2): mfma(OA + 4 * tau, HO, DNO + 4 * tau, False)
    L("L_Hnodn2")
    I("s_cmp_eq_u32 s3, 0\ns_cbranch_scc1 L_Hb6\ns_barrier")
    L("L_Hb6")
    CA = 132
    I("ds_read_b128 v[16:19], v5\nds_read_b32 v20, v6\ns_waitcnt lgkmcnt(0)")
    for n in range(4):
        for r in range(4): I(f"v_and_b32 v{CA+4*n+r}, v{16+n}, v{8+r}")
    I("s_mov_b32 s15, 0")
    L("L_HpollP")
    I("s_waitcnt vmcnt(0)")
    I(f"v_max3_u32 v21, v{PL}, v{PL+1}, v{PL+2}")
    for i in range(3, 15, 2): I(f"v_max3_u32 v21, v21, v{PL+i}, v{PL+i+1}")
    I(f"v_max_u32 v21, v21, v{PL+15}\nv_cmp_eq_u32 vcc, -1, v21\ns_cbranch_vccz L_HpollPd\ns_add_u32 s15, s15, 1\ns_cmp_gt_u32 s15, {SPIN}\ns_cbranch_scc1 L_HpollPd")
    payload()
    I("s_branch L_HpollP")
    L("L_HpollPd")
    TS(10)
    if prof: I("s_add_u32 s90, s15, 1")
    for n in range(4): mfma(24, CA + 4 * n, PL + 4 * n, n == 0)
    exec_set(0xffffffff, 0)
    I("v_mul_f32 v24, v24, v20\nv_mul_f32 v25, v25, v20\nv_mul_f32 v26, v26, v20\nv_mul_f32 v27, v27, v20\nv_cvt_pk_bf16_f32 v24, v24, v25\nv_cvt_pk_bf16_f32 v25, v26, v27\nds_write_b64 v7, v[24:25]")
    exec_all()
    I("s_waitcnt lgkmcnt(0)\ns_barrier")
    CO = 116
    for ks in range(8): I(f"ds_read_b128 {vr(CO+4*ks)}, v12 offset:{64*ks}")
    for ks in range(8):
        I(f"s_waitcnt lgkmcnt({7-ks})")
        mfma(28, UVO + 4 * ks, CO + 4 * ks, ks == 0)
    for r in range(4): dpp("v_add_f32", 28 + r, "quad_perm:[2,3,0,1]")
    exec_set(0x00030003, 0x00030003)
    I("v_cvt_pk_bf16_f32 v28, v28, v29\nv_cvt_pk_bf16_f32 v29, v30, v31\nds_write_b64 v13, v[28:29]")
    exec_all()
    I("s_waitcnt lgkmcnt(0)\ns_barrier")
    for ks in range(4): I(f"ds_read_b128 {vr(CO+4*ks)}, v14 offset:{64*ks}")
    I("s_mov_b32 s15, 0xffffff00\nv_mov_b32 v16, s43")
    for ks in range(4):
        I(f"s_waitcnt lgkmcnt({3-ks})")
        for tau in range(2): mfma(OA + 4 * tau, CO + 4 * ks, WOO + 16 * tau + 4 * ks, False)
    exec_set(0xffffffff, 0)
    for tau in range(2): I(f"v_and_or_b32 v{18+tau}, v{OA+4*tau}, s15, v16")
    I(f"buffer_store_dwordx2 v[18:19], v15, {WS}, s11 offen sc1")
    exec_all()
    TS(11)
    I("s_branch L_fin")

    L("L_B0b")
    I("s_barrier")
    ckdma(12)
    I("s_branch L_B2")
    L("L_B1")
    I("s_waitcnt lgkmcnt(0)\ns_add_u32 s42, s42, 1\ns_and_b32 s43, s42, 0xff\ns_barrier")
    if o['ukpf']:
        I(f"""s_cmp_lg_u32 s3, 3
s_cbranch_scc1 L_Bnuk
s_mov_b64 s[52:53], s[22:23]
s_lshl_b32 s11, s97, 20
s_lshl_b32 s12, s96, 8
s_add_u32 s11, s11, s12
s_add_u32 s11, s11, 0x80000
s_add_u32 s12, s11, 0x40000
v_lshrrev_b32 v8, 1, v1
v_lshlrev_b32 v8, 13, v8
v_and_b32 v9, 1, v1
v_lshl_add_u32 v8, v9, 7, v8
buffer_load_dword v236, v8, {SW}, s11 offen {nt}
buffer_load_dword v237, v8, {SW}, s12 offen {nt}
L_Bnuk:""")
    I(f"s_cmp_le_u32 s3, {o['nearly']}\ns_cbranch_scc1 L_B1b\ns_barrier")
    if o['cleanpos'] == 0:
        I("s_cmp_lt_u32 s3, 4\ns_cbranch_scc1 L_B1b")
        clean(4)
    L("L_B1b")
    ckdma(16)
    I(f"s_cmp_le_u32 s3, {o['nearly']}\ns_cbranch_scc0 L_B2\ns_barrier")
    L("L_B2")
    KO, VO, QR, QO2 = 32, 96, 176, 176
    I(f"""v_lshlrev_b32 v4, 4, v1
v_and_b32 v10, 255, v0
v_lshlrev_b32 v5, 4, v10
s_lshl_b32 s12, s6, 1
s_add_u32 s12, s12, s8
s_lshl_b32 s12, s12, 15
s_add_u32 s12, s12, {O_H2:#x}""")
    def h2loads():
        I("s_mov_b32 s13, s12")
        for n in range(8):
            I(f"buffer_load_dwordx4 {vr(QR+4*n)}, v5, {WS}, s13 offen sc1")
            if n < 7: I("s_add_u32 s13, s13, 4096")
    if o['h2early']:
        I("s_cmp_lt_u32 s3, 4\ns_cbranch_scc1 L_B2a")
        h2loads()
        L("L_B2a")
    I(f"""v_mul_u32_u24 v7, {CKS}, v3
v_lshl_add_u32 v7, v2, 4, v7
v_add_u32 v6, s9, v7
v_add_u32 v7, {L_QL}, v7
v_lshrrev_b32 v8, 2, v1
v_mul_u32_u24 v8, {CKS}, v8
v_and_b32 v9, 3, v1
v_lshl_add_u32 v8, v9, 3, v8
s_lshl_b32 s9, s5, 7
v_add_u32 v8, s9, v8
v_add_u32 v9, {64*CKS}, v8
v_lshrrev_b32 v10, 7, v10
v_mul_u32_u24 v10, {CKS}, v10
v_and_b32 v11, 127, v0
v_lshl_add_u32 v10, v11, 3, v10
v_add_u32 v10, {L_QL}, v10""")
    I(f"""v_lshlrev_b32 v28, 5, v3
v_add_u32 v28, {L_MX}, v28
s_lshl_b32 s9, s5, 2
v_add_u32 v11, s9, v28
v_add_u32 v30, {L_PB}, v4
s_lshr_b32 s9, s5, 1
s_lshl_b32 s9, s9, 10
s_and_b32 s10, s5, 1
s_lshl_b32 s10, s10, 3
s_add_u32 s9, s9, s10
v_add_u32 v29, s9, v30""")
    I(f"""v_lshrrev_b32 v31, 3, v3
v_lshl_add_u32 v31, v2, 2, v31
v_lshlrev_b32 v31, 16, v31
v_and_b32 v16, 7, v3
v_lshl_add_u32 v31, v16, 4, v31
s_lshl_b32 s10, s8, 20
s_lshr_b32 s9, s5, 2
s_lshl_b32 s9, s9, 15
s_add_u32 s10, s10, s9
s_lshl_b32 s9, s6, 14
s_add_u32 s10, s10, s9
s_lshl_b32 s9, s7, 9
s_add_u32 s10, s10, s9
s_and_b32 s9, s5, 3
s_lshl_b32 s9, s9, 7
s_add_u32 s10, s10, s9
s_add_u32 s10, s10, {O_H3:#x}""")
    I(f"""s_lshl_b32 s11, s6, 5
s_add_u32 s11, s11, s7
s_lshl_b32 s11, s11, 1
s_add_u32 s11, s11, s8
s_lshl_b32 s11, s11, 8
s_add_u32 s11, s11, {O_ST:#x}""")
    if o['h2early']:
        I("s_cmp_lt_u32 s3, 4\ns_cbranch_scc1 L_B3a\ns_waitcnt vmcnt(8)\ns_branch L_B3b\nL_B3a:\ns_waitcnt vmcnt(0)\nL_B3b:")
    else:
        I("s_waitcnt vmcnt(0)")
    TS(11)
    for ks in range(16): I(f"ds_read_b128 {vr(KO+4*ks)}, v6 offset:{64*ks}")
    I("s_barrier")
    def vreads():
        for tau in range(4):
            for ks in range(4):
                for t in range(2):
                    oo = VO + 16 * tau + 4 * ks + 2 * t
                    I(f"ds_read_b64_tr_b16 v[{oo}:{oo+1}], v{8+ks//2} offset:{(32*(ks%2)+16*t)*CKS+32*tau}")
    I("s_cmp_lt_u32 s3, 4\ns_cbranch_scc0 L_B4")
    if o['cleanpos'] == 1: clean(0)
    I("s_branch L_B5")
    L("L_B4")
    if not o['h2early']: h2loads()
    I("s_mov_b32 s9, 0\nv_mov_b32 v17, 0x07060302")
    L("L_Bpoll")
    for n in range(8):
        I(f"s_waitcnt vmcnt({7-n})")
        for i in range(4):
            if n == 0 and i == 0: I(f"v_xor_b32 v16, s42, v{QR}")
            else: I(f"v_bitop3_b32 v16, v16, v{QR+4*n+i}, s42 bitop3:0xf6")
    I(f"v_and_b32 v16, 0xffff, v16\nv_cmp_ne_u32 vcc, 0, v16\ns_cbranch_vccz L_Bpolld\ns_add_u32 s9, s9, 1\ns_cmp_gt_u32 s9, {SPIN}\ns_cbranch_scc1 L_Bpolld")
    h2loads()
    I("s_branch L_Bpoll")
    L("L_Bpolld")
    TS(5)
    if prof: I("s_add_u32 s88, s9, 1")
    for n in range(8):
        I(f"v_perm_b32 v{QR+4*n}, v{QR+4*n+1}, v{QR+4*n}, v17\nv_perm_b32 v{QR+4*n+1}, v{QR+4*n+3}, v{QR+4*n+2}, v17")
        I(f"ds_write_b64 v10, v[{QR+4*n}:{QR+4*n+1}] offset:{2*CKS*n}")
    L("L_B5")
    vreads()
    I("s_waitcnt lgkmcnt(0)\ns_barrier")
    TS(10)
    if o['bpf']:
        I(f"""s_cmp_ge_u32 s3, 4
s_cbranch_scc1 L_Bnpf
s_lshr_b32 s98, s97, 1
s_and_b32 s99, s97, 1
s_cmp_eq_u32 s98, s99
s_cbranch_scc0 L_Bpfo
s_mov_b64 s[52:53], s[24:25]
s_lshl_b32 s98, s98, 2
s_add_u32 s98, s98, s3
s_lshl_b32 s98, s98, 19
s_lshl_b32 s99, s96, 8
s_add_u32 s98, s98, s99
s_add_u32 s98, s98, 0x40000
v_lshrrev_b32 v16, 1, v1
v_lshlrev_b32 v16, 13, v16
v_and_b32 v17, 1, v1
s_branch L_Bpf2
L_Bpfo:
s_mov_b64 s[52:53], s[26:27]
s_lshl_b32 s98, s96, 2
s_add_u32 s98, s98, s3
s_lshl_b32 s98, s98, 15
s_lshl_b32 s99, s99, 9
s_add_u32 s98, s98, s99
s_add_u32 s98, s98, 0x4000
v_lshrrev_b32 v16, 2, v1
v_lshlrev_b32 v16, 10, v16
v_and_b32 v17, 3, v1
L_Bpf2:
v_lshl_add_u32 v16, v17, 7, v16
buffer_load_dword v27, v16, {SW}, s98 offen {nt}
L_Bnpf:""")
    for ks in range(15): I(f"ds_read_b128 {vr(QO2+4*ks)}, v7 offset:{64*ks}")
    for ks in range(16):
        if ks == 1: I(f"ds_read_b128 {vr(QO2+60)}, v7 offset:{64*15}")
        I(f"s_waitcnt lgkmcnt({14 if ks == 0 else 15-ks})")
        mfma(16, KO + 4 * ks, QO2 + 4 * ks, ks == 0)
    kappa = (128 ** -0.5) * math.log2(math.e)
    if o['score_mimic']:
        I(f"s_mov_b32 s9, 0xffff0000\ns_mov_b32 s12, {f32(128 ** -0.5)}")
        for rep in range(2):
            I("v_cvt_pk_bf16_f32 v20, v16, v17\nv_cvt_pk_bf16_f32 v21, v18, v19\nv_lshlrev_b32 v16, 16, v20\nv_and_b32 v17, s9, v20\nv_lshlrev_b32 v18, 16, v21\nv_and_b32 v19, s9, v21")
            if rep == 0:
                for r in range(4): I(f"v_mul_f32 v{16+r}, s12, v{16+r}")
        kappa = math.log2(math.e)
    I(f"s_mov_b32 s9, {f32(kappa)}")
    I("v_max3_f32 v20, v16, v17, v18\nv_max_f32 v20, v20, v19")
    swap_red("v_max_f32", 20, 21, 16)
    swap_red("v_max_f32", 20, 21, 32)
    I("ds_write_b32 v11, v20\ns_waitcnt lgkmcnt(0)\ns_barrier")
    I("ds_read_b128 v[20:23], v28\nds_read_b128 v[12:15], v28 offset:16\ns_waitcnt lgkmcnt(1)\nv_max3_f32 v20, v20, v21, v22\nv_max_f32 v20, v20, v23\ns_waitcnt lgkmcnt(0)\nv_max3_f32 v20, v20, v12, v13\nv_max3_f32 v20, v20, v14, v15")
    I("v_mul_f32 v20, s9, v20")
    for r in range(4): I(f"v_fma_f32 v{16+r}, v{16+r}, s9, -v20")
    for r in range(4): I(f"v_exp_f32 v{16+r}, v{16+r}")
    I("v_cvt_pk_bf16_f32 v16, v16, v17\nv_cvt_pk_bf16_f32 v17, v18, v19\nds_write_b64 v29, v[16:17]\ns_waitcnt lgkmcnt(0)")
    if o['cleanpos'] == 1: I("s_waitcnt vmcnt(0)")
    I("s_barrier")
    TS(6)
    PO, OC = 160, 176
    for ks in range(4): I(f"ds_read_b128 {vr(PO+4*ks)}, v30 offset:{1024*ks}")
    I("s_cmp_eq_u32 s3, 0\ns_cbranch_scc0 L_Bpv")
    for r in range(4): I(f"v_mov_b32 v{12+r}, 0x3f803f80")
    I("v_mov_b32 v21, s42\nv_mov_b32 v23, s42\ns_waitcnt lgkmcnt(0)")
    for ks in range(4): mfma(16, 12, PO + 4 * ks, ks == 0)
    exec_set(0xffff, 0)
    I(f"v_mov_b32 v22, v16\nbuffer_store_dwordx4 v[20:23], v4, {WS}, s11 offen sc1")
    exec_all()
    L("L_Bpv")
    I("v_mov_b32 v24, -2\ns_add_u32 s12, s10, 0x20000")
    for ks in range(4):
        I(f"s_waitcnt lgkmcnt({3-ks})")
        for tau in range(4): mfma(OC + 4 * tau, PO + 4 * ks, VO + 16 * tau + 4 * ks, ks == 0)
    for rho in range(2):
        T = 192 + 8 * rho; O = T + 4
        for e in range(2):
            r = 2 * rho + e
            I(f"v_cvt_pk_bf16_f32 v{T+2*e}, v{OC+r}, v{OC+4+r}\nv_cvt_pk_bf16_f32 v{T+2*e+1}, v{OC+8+r}, v{OC+12+r}")
        for i in range(4): I(f"v_min_u32 v{O+i}, v{T+i}, v24")
        for i in range(2):
            I(f"v_min_u32_dpp v{O+i}, v{T+2+i}, v24 row_ror:8 row_mask:0xf bank_mask:0xc")
            I(f"v_min_u32_dpp v{O+2+i}, v{T+i}, v24 row_ror:8 row_mask:0xf bank_mask:0x3")
        I(f"buffer_store_dwordx4 {vr(O)}, v31, {WS}, s{10 if rho == 0 else 12} offen sc1")
    TS(7)
    I("s_cmp_lg_u32 s3, 0\ns_cbranch_scc1 L_fin\ns_cmp_ge_u32 s2, 160\ns_cbranch_scc1 L_fin")
    I(f"""s_sub_u32 s9, s2, 128
s_lshl_b32 s10, s9, 13
s_add_u32 s10, s10, {O_H5:#x}
s_add_u32 s13, s10, 4096
s_lshl_b32 s11, s9, 6
v_and_b32 v5, 7, v1
v_lshlrev_b32 v5, 2, v5
buffer_load_dword v6, v5, {SX}, s11 offen
buffer_load_dword v7, v5, {SX}, s11 offen offset:32
s_mov_b32 s12, 0""")
    L("L_Dpoll")
    for n in range(8): I(f"buffer_load_dwordx4 {vr(32+4*n)}, v4, {WS}, s{10 if n < 4 else 13} offen offset:{1024*(n%4)} sc1")
    I("s_add_u32 s12, s12, 1")
    for n in range(8):
        I(f"s_waitcnt vmcnt({7-n})")
        for i in range(4):
            if n == 0 and i == 0: I("v_xor_b32 v8, s43, v32")
            else: I(f"v_bitop3_b32 v8, v8, v{32+4*n+i}, s43 bitop3:0xf6")
    I(f"v_and_b32 v8, 0xff, v8\nv_cmp_ne_u32 vcc, 0, v8\ns_cmp_gt_u32 s12, {SPIN}\ns_cbranch_scc1 L_Dpolld\ns_cbranch_vccnz L_Dpoll")
    L("L_Dpolld")
    TS(8)
    def pk(a, b): I(f"v_pk_add_f32 v[{a}:{a+1}], v[{a}:{a+1}], v[{b}:{b+1}]")
    for st in (4, 8, 16):
        for base in range(32, 64, 2 * st):
            pk(base, base + st); pk(base + 2, base + st + 2)
    for r in range(4): dpp("v_add_f32", 32 + r, "row_ror:8")
    for which in (16, 32):
        for r in range(4): I(f"v_mov_b32 v{36+r}, v{32+r}")
        for r in range(4): I(f"v_permlane{which}_swap_b32 v{32+r}, v{36+r}")
        for r in range(4): I(f"v_add_f32 v{32+r}, v{32+r}, v{36+r}")
    I("v_lshlrev_b32 v36, 16, v6\nv_and_b32 v38, 0xffff0000, v6\nv_lshlrev_b32 v37, 16, v7\nv_and_b32 v39, 0xffff0000, v7")
    for r in range(4): I(f"v_add_f32 v{32+r}, v{32+r}, v{36+r}")
    I("v_cvt_pk_bf16_f32 v32, v32, v34\nv_cvt_pk_bf16_f32 v33, v33, v35")
    exec_set(0xff, 0)
    I(f"buffer_store_dword v32, v5, {SK}, s11 offen\nbuffer_store_dword v33, v5, {SK}, s11 offen offset:32")
    I("s_cmp_lg_u32 s2, 128\ns_cbranch_scc1 L_Dend")
    exec_set(1, 0)
    I(f"v_mov_b32 v8, s42\nv_mov_b32 v9, 0\nbuffer_store_dword v8, v9, {WS}, 0 offen offset:{O_EP} sc1")
    if o['hold']:
        if o['henc'] >= 0:
            I(f"s_waitcnt lgkmcnt(0)\ns_sub_u32 s94, s{64+2*o['henc']}, s92\ns_lshl_b32 s94, s94, 2\ns_add_u32 s92, s92, s94")
        I(f"s_add_u32 s92, s92, {o['hold']}\nL_hold:\ns_memrealtime s[94:95]\ns_waitcnt lgkmcnt(0)\ns_sub_u32 s94, s94, s92\ns_cmp_lt_i32 s94, 0\ns_cbranch_scc1 L_hold")
    L("L_Dend")
    exec_all()
    TS(9)
    L("L_fin")
    if prof:
        I(f"s_waitcnt lgkmcnt(0)\ns_lshl_b32 s9, s2, 3\ns_add_u32 s9, s9, s3\ns_lshl_b32 s9, s9, 6\ns_add_u32 s9, s9, {O_TS:#x}\nv_mov_b32 v9, 0")
        exec_set(1, 0)
        for k in range(16):
            I(f"v_mov_b32 v8, s{64+2*k}\nbuffer_store_dword v8, v9, {WS}, s9 offen offset:{4*k}")
    L("L_end")
    I("s_endpgm")

    src = f"""; fused single-launch MLA(absorbed) decode attention + GLU, generated by gen/gen.py
; @launch grid=(256,1,1) block=(512,1,1) lds={LDS_BYTES}
.amdgcn_target "amdgcn-amd-amdhsa--gfx950"
.text
.globl {KNAME}
.p2align 8
.type {KNAME},@function
{KNAME}:
""" + A.text() + f""".section .rodata,"a"
.p2align 6
.amdhsa_kernel {KNAME}
  .amdhsa_next_free_vgpr 240
  .amdhsa_next_free_sgpr 100
  .amdhsa_accum_offset 240
  .amdhsa_group_segment_fixed_size 0
  .amdhsa_kernarg_size 104
  .amdhsa_user_sgpr_count 2
  .amdhsa_user_sgpr_kernarg_segment_ptr 1
  .amdhsa_system_sgpr_workgroup_id_x 1
.end_amdhsa_kernel
"""
    return src

if __name__ == "__main__":
    out = "parallel_sum__compressed_kv_cla__glu_gated_glu__decode.s"
    kw = {}
    for a in sys.argv[1:]:
        k, v = a.split("=", 1)
        if k == "o": out = v
        elif k == "nt": kw[k] = v
        else: kw[k] = int(v)
    open(out, "w").write(gen(**kw))
```

```python
import sys, struct, math
from asmlib import Asm

KNAME = "parallel_sum__compressed_kv_cla__glu_gated_glu__decode_kernel"
O_EP, O_H1, O_HG, O_H2, O_ST, O_H3, O_H1B, O_H5, O_TS = 0, 0x10000, 0x50000, 0x80000, 0xA0000, 0x100000, 0x300000, 0x340000, 0x400000
H5S = 112 * 128
WSSZ = 0x800000
GUSZ = 512 * 1376 * 2
CKS = 1056
L_CK, L_QL, L_PB, L_MX, L_HB = 0, 135168, 152064, 156160, 156672
L_DN = 0
L_UV, L_WO, L_QB, L_CF, L_CC, L_CX = 0, 65536, 147456, 148096, 148480, 150784
LDS_BYTES = 156928
SPIN = 20000

def f32(x): return "0x%08x" % struct.unpack("<I", struct.pack("<f", x))[0]
def vr(a, n=4): return f"v[{a}:{a+n-1}]"

DEF = dict(prof=0, ln_mimic=1, score_mimic=0, pf=1, h1fast=1, fastn=12, hold=0, henc=-1,
           nt1="", nt2="", nt3="",
           nearly=0, h1touch=1, cleanpos=1, glu=1, axor=2, strip=1, late67=0, ukpf=1)

def gen(**kw):
    o = dict(DEF); o.update(kw)
    prof = o['prof']; nt1, nt2, nt3 = o['nt1'], o['nt2'], o['nt3']
    A = Asm(); I = A.I; L = A.L; C = A.C
    def TS(k):
        if prof or o['henc'] == k: I(f"s_memrealtime s[{64+2*k}:{65+2*k}]")
    def exec_set(lo, hi):
        I(f"s_mov_b32 exec_lo, {lo:#x}\ns_mov_b32 exec_hi, {hi:#x}")
    def exec_all(): I("s_mov_b64 exec, -1")
    def swap_red(op, v, t, which):
        I(f"v_mov_b32 v{t}, v{v}\nv_permlane{which}_swap_b32 v{v}, v{t}\n{op} v{v}, v{v}, v{t}")
    def dpp(op, v, ctl): I(f"{op}_dpp v{v}, v{v}, v{v} {ctl} row_mask:0xf bank_mask:0xf")
    def mfma(d, a, b, first): I(f"v_mfma_f32_16x16x32_bf16 {vr(d)}, {vr(a)}, {vr(b)}, {'0' if first else vr(d)}")
    def tagcheck(acc, regs, tag, first=True):
        for i, r in enumerate(regs):
            if first and i == 0: I(f"v_xor_b32 v{acc}, {tag}, v{r}")
            else: I(f"v_bitop3_b32 v{acc}, v{acc}, v{r}, {tag} bitop3:0xf6")
    WS, SX, SW, SK, SV = "s[44:47]", "s[48:51]", "s[52:55]", "s[56:59]", "s[60:63]"
    XS, XC, WR, UK = 8, 16, 24, 88
    F, T0, T1, T2, T3, AOP, ACC, G = 112, 128, 129, 130, 131, 132, 140, 144
    XP, SEL = 240, 248

    TS(0)
    if o['hold']: I("s_memrealtime s[92:93]")
    I("s_load_dwordx16 s[16:31], s[0:1], 0\ns_load_dwordx8 s[32:39], s[0:1], 64\ns_load_dwordx2 s[40:41], s[0:1], 96")
    I("s_cmp_ge_u32 s2, 256\ns_cbranch_scc1 L_end")
    I("v_lshrrev_b32 v4, 6, v0\nv_and_b32 v1, 63, v0\nv_readfirstlane_b32 s3, v4\nv_lshrrev_b32 v2, 4, v1\nv_and_b32 v3, 15, v1")
    I(f"s_mov_b32 s46, {WSSZ:#x}\ns_mov_b32 s47, 0x20000\ns_mov_b32 s50, 2048\ns_mov_b32 s51, 0x20000\ns_mov_b32 s54, 0x400000\ns_mov_b32 s55, 0x20000\ns_mov_b32 s59, 0x20000\ns_mov_b32 s63, 0x20000")
    if prof:
        for k in range(1, 16): I(f"s_mov_b32 s{64+2*k}, 0")
    I("""s_and_b32 s4, s2, 7
s_lshr_b32 s5, s2, 3
s_bfe_u32 s15, s5, 0x20002
s_and_b32 s7, s5, 3
s_lshr_b32 s96, s5, 4
s_xor_b32 s96, s96, s15
s_and_b32 s96, s96, 1
s_lshl_b32 s96, s96, 2
s_add_u32 s96, s96, s7
s_lshl_b32 s6, s4, 2
s_add_u32 s6, s6, s15""")
    I("s_cmp_lg_u32 s3, 0\ns_cbranch_scc1 L_not0")
    I(f"""s_cmp_lt_u32 s2, 128
s_cselect_b32 s10, {o['axor']}, 0
s_xor_b32 s10, s10, s6
s_lshl_b32 s13, s10, 3
s_add_u32 s13, s13, s96
s_lshl_b32 s13, s13, 10
s_lshl_b32 s11, s96, 19
s_lshl_b32 s10, s10, 8
s_add_u32 s11, s11, s10
s_lshl_b32 s12, s96, 7
v_lshrrev_b32 v8, 3, v3
v_lshlrev_b32 v8, 10, v8
v_lshl_add_u32 v5, v2, 5, v8
v_and_b32 v9, 7, v1
v_lshl_add_u32 v9, v2, 3, v9
v_lshl_add_u32 v4, v9, 4, v8
v_lshlrev_b32 v6, 17, v2
v_lshl_add_u32 v6, v3, 4, v6""")
    I("s_waitcnt lgkmcnt(0)\ns_mov_b64 s[48:49], s[16:17]\ns_mov_b64 s[52:53], s[20:21]")
    I(f"buffer_load_dwordx4 {vr(XS)}, v4, {SX}, 0 offen\nbuffer_load_dwordx4 {vr(XS+4)}, v4, {SX}, 0 offen offset:512")
    I(f"buffer_load_dwordx4 {vr(XC)}, v5, {SX}, s12 offen\nbuffer_load_dwordx4 {vr(XC+4)}, v5, {SX}, s12 offen offset:16")
    for n in range(16):
        I(f"buffer_load_dwordx4 {vr(WR+4*n)}, v6, {SW}, s11 offen {nt1}")
        if n < 15: I(f"s_add_u32 s11, s11, 8192")
    I("s_branch L_c1")
    L("L_not0")
    if o['pf']:
        I("s_cmp_lg_u32 s3, 7\ns_cbranch_scc1 L_nopf\ns_getpc_b64 s[8:9]")
        L("L_pc")
        I("v_and_b32 v4, 7, v1\nv_lshlrev_b32 v4, 6, v4\ns_lshl_b32 s10, s5, 9\nv_add_u32 v4, s10, v4\nv_min_u32 v5, L_end-L_pc, v4\nglobal_load_dword v232, v5, s[8:9]")
        L("L_nopf")
    I("s_waitcnt lgkmcnt(0)\ns_mov_b64 s[48:49], s[16:17]\ns_mov_b64 s[52:53], s[20:21]")
    L("L_c1")
    I(f"s_mov_b64 s[44:45], s[40:41]\ns_load_dword s42, s[40:41], {O_EP}")
    TS(1)
    I("s_cmp_ge_u32 s2, 128\ns_cbranch_scc1 L_B0")
    I("s_mov_b64 s[56:57], s[22:23]\ns_mov_b32 s58, 0x400000\ns_mov_b64 s[60:61], s[24:25]\ns_mov_b32 s62, 0x400000\ns_lshr_b32 s8, s7, 1\ns_and_b32 s9, s7, 1")
    I(f"""v_xor_b32 v7, v3, v2
v_lshlrev_b32 v7, 4, v7
v_lshl_add_u32 v7, v2, 13, v7
s_lshl_b32 s15, s7, 3
s_add_u32 s15, s15, s3
s_lshl_b32 s15, s15, 17
s_lshl_b32 s11, s6, 8
s_add_u32 s15, s15, s11
s_lshl_b32 s11, s3, 13
s_barrier""")
    if o['h1touch']:
        I(f"s_cmp_lg_u32 s3, 1\ns_cbranch_scc1 L_Hnt\nv_lshlrev_b32 v4, 5, v1\ns_lshl_b32 s10, s6, 2\ns_add_u32 s10, s10, s7\ns_lshl_b32 s10, s10, 11\ns_add_u32 s10, s10, {O_H1 if o['h1fast'] else O_H1B:#x}\nbuffer_load_dword v237, v4, {WS}, s10 offen sc1\nL_Hnt:")
    for n in range(4):
        I(f"s_mov_b32 m0, s11\ns_add_u32 s11, s11, 1024\nbuffer_load_dwordx4 v7, {SK}, s15 offen {nt1} lds\ns_add_u32 s15, s15, 0x8000")
        if n < 3: I(f"v_xor_b32 v7, {64*(n ^ (n+1))}, v7")
    I("s_waitcnt lgkmcnt(0)\ns_add_u32 s42, s42, 1\ns_and_b32 s43, s42, 0xff")
    I("s_cmp_eq_u32 s3, 0\ns_cbranch_scc1 L_A1\ns_cmp_ge_u32 s3, 4\ns_cbranch_scc1 L_Hpoll1\ns_barrier\ns_waitcnt vmcnt(0)")
    TS(3)
    I("s_branch L_Hb2")
    L("L_B0")
    I(f"""s_lshl_b32 s97, s7, 20
s_lshl_b32 s8, s6, 8
s_add_u32 s97, s97, s8
s_bfe_u32 s8, s5, 0x30001
s_lshr_b32 s6, s4, 2
s_and_b32 s7, s4, 3
s_lshl_b32 s7, s7, 3
s_add_u32 s7, s7, s8
s_and_b32 s8, s5, 1
s_lshl_b32 s5, s8, 2
s_xor_b32 s5, s5, s3
s_lshl_b32 s10, s6, 5
s_add_u32 s10, s10, s7
s_lshl_b32 s10, s10, 3
s_add_u32 s10, s10, s5
s_lshl_b32 s10, s10, 14
s_mul_i32 s9, s5, {16*CKS}
s_mov_b32 s14, s9
v_lshlrev_b32 v7, 4, v1
s_mov_b64 s[60:61], s[18:19]
s_mov_b32 s62, 0x800000
s_mov_b64 s[56:57], s[36:37]
s_mov_b32 s58, 2048
s_barrier""")
    def ckdma(cnt, pol):
        for n in range(cnt):
            I(f"s_mov_b32 m0, s14\ns_add_u32 s14, s14, {CKS}\nbuffer_load_dwordx4 v7, {SV}, s10 offen {pol} lds\ns_add_u32 s10, s10, 1024")
    I("s_cmp_lg_u32 s3, 0\ns_cbranch_scc1 L_B1")
    ckdma(4, nt2)
    I("s_waitcnt lgkmcnt(0)\ns_add_u32 s42, s42, 1\ns_and_b32 s43, s42, 0xff")
    L("L_A1")
    extra = 4
    I(f"""v_and_b32 v{T0}, 1, v1
v_lshlrev_b32 v{T0}, 4, v{T0}
v_mov_b32 v{T1}, 0x0c0c0100
v_mov_b32 v{T2}, 0x0c0c0302
v_alignbit_b32 v{T1}, v{T1}, v{T1}, v{T0}
v_alignbit_b32 v{T2}, v{T2}, v{T2}, v{T0}
v_bfe_u32 v{T0}, v1, 1, 2
v_mov_b32 v{T3}, 0x0c0c0c0c""")
    for r in range(4):
        I(f"v_cmp_eq_u32 vcc, {r}, v{T0}\nv_cndmask_b32 v{SEL+2*r}, v{T3}, v{T1}, vcc\nv_cndmask_b32 v{SEL+2*r+1}, v{T3}, v{T2}, vcc")
    I(f"v_lshlrev_b32 v4, 4, v1")
    I(f"s_mov_b32 s15, 0xffff0000\nv_mov_b32 v{T3}, 0x3f803f80\nv_mov_b32 v{T0}, 0")
    I(f"s_waitcnt vmcnt({18+extra})")
    TS(2)
    for i in range(8): I(f"v_dot2_f32_bf16 v{T0}, v{XS+i}, v{T3}, v{T0}")
    def unp(dst, src, i):
        I(f"v_lshlrev_b32 v{dst+2*i}, 16, v{src+i}\nv_and_b32 v{dst+2*i+1}, s15, v{src+i}")
    unp(F, XS, 0); unp(F, XS, 1)
    dpp("v_add_f32", T0, "quad_perm:[1,0,3,2]"); unp(F, XS, 2)
    dpp("v_add_f32", T0, "quad_perm:[2,3,0,1]"); unp(F, XS, 3)
    dpp("v_add_f32", T0, "row_half_mirror")
    I(f"v_mov_b32 v{T1}, v{T0}"); unp(F, XS, 4)
    I(f"v_permlane16_swap_b32 v{T0}, v{T1}\nv_add_f32 v{T0}, v{T0}, v{T1}\nv_mov_b32 v{T1}, v{T0}"); unp(F, XS, 5)
    I(f"v_permlane32_swap_b32 v{T0}, v{T1}\nv_add_f32 v{T0}, v{T0}, v{T1}")
    unp(F, XS, 6); unp(F, XS, 7)
    I(f"v_mul_f32 v{T0}, {f32(-1.0/512)}, v{T0}")
    I(f"v_mov_b32 v{T1}, v{T0}")
    for i in range(8): I(f"v_pk_add_f32 v[{F+2*i}:{F+2*i+1}], v[{F+2*i}:{F+2*i+1}], v[{T0}:{T1}]")
    I(f"v_pk_mul_f32 v[{T2}:{T3}], v[{F}:{F+1}], v[{F}:{F+1}]")
    for i in range(1, 8): I(f"v_pk_fma_f32 v[{T2}:{T3}], v[{F+2*i}:{F+2*i+1}], v[{F+2*i}:{F+2*i+1}], v[{T2}:{T3}]")
    I(f"v_add_f32 v{T2}, v{T2}, v{T3}")
    I(f"s_waitcnt vmcnt({16+extra})")
    unp(G, XC, 0)
    dpp("v_add_f32", T2, "quad_perm:[1,0,3,2]"); unp(G, XC, 1)
    dpp("v_add_f32", T2, "quad_perm:[2,3,0,1]"); unp(G, XC, 2)
    dpp("v_add_f32", T2, "row_half_mirror")
    I(f"v_mov_b32 v{T3}, v{T2}"); unp(G, XC, 3)
    I(f"v_permlane16_swap_b32 v{T2}, v{T3}\nv_add_f32 v{T2}, v{T2}, v{T3}\nv_mov_b32 v{T3}, v{T2}"); unp(G, XC, 4)
    I(f"v_permlane32_swap_b32 v{T2}, v{T3}\nv_add_f32 v{T2}, v{T2}, v{T3}")
    I(f"v_mul_f32 v{T2}, {f32(1.0/512)}, v{T2}")
    I(f"v_cvt_pk_bf16_f32 v{T3}, v{T0}, v{T2}")
    unp(G, XC, 5)
    I(f"v_lshlrev_b32 v{T0}, 16, v{T3}\nv_and_b32 v{T2}, s15, v{T3}")
    I(f"v_add_f32 v{T2}, {f32(1e-5)}, v{T2}\nv_cvt_pk_bf16_f32 v{T2}, v{T2}, v{T2}\nv_and_b32 v{T2}, s15, v{T2}\nv_sqrt_f32 v{T2}, v{T2}")
    unp(G, XC, 6)
    I(f"v_cvt_pk_bf16_f32 v{T2}, v{T2}, v{T2}\nv_and_b32 v{T2}, s15, v{T2}\nv_rcp_f32 v{T2}, v{T2}")
    unp(G, XC, 7)
    I(f"v_mov_b32 v{T1}, v{T0}\nv_mov_b32 v{T3}, v{T2}")
    for i in range(8):
        p = f"v[{G+2*i}:{G+2*i+1}]"
        I(f"v_pk_add_f32 {p}, {p}, v[{T0}:{T1}]")
        if o['ln_mimic']:
            I(f"v_cvt_pk_bf16_f32 v{XP+i}, v{G+2*i}, v{G+2*i+1}")
            unp(G, XP, i)
        I(f"v_pk_mul_f32 {p}, {p}, v[{T2}:{T3}]")
        I(f"v_cvt_pk_bf16_f32 v{XP+i}, v{G+2*i}, v{G+2*i+1}")
    TS(3)
    def aop(n, base):
        for r in range(4): I(f"v_perm_b32 v{base+4*(n%2)+r}, v{XP+n//2}, v{XP+n//2}, v{SEL+2*r+(n%2)}")
    aop(0, AOP)
    for n in range(16):
        if n < 15: aop(n + 1, AOP)
        I(f"s_waitcnt vmcnt({extra+15-n})")
        mfma(ACC, AOP + 4 * (n % 2), WR + 4 * n, n == 0)
    I(f"s_mov_b32 s15, 0xffffff00\nv_mov_b32 v{T0}, s43")
    I(f"s_add_u32 s12, s13, {O_H1:#x}\ns_add_u32 s13, s13, {O_H1B:#x}")
    for r in range(4): I(f"v_and_or_b32 v{ACC+r}, v{ACC+r}, s15, v{T0}")
    if o['h1fast']: I(f"buffer_store_dwordx4 {vr(ACC)}, v4, {WS}, s12 offen")
    I(f"buffer_store_dwordx4 {vr(ACC)}, v4, {WS}, s13 offen sc1")
    TS(4)
    I("s_barrier\ns_cmp_ge_u32 s2, 128\ns_cbranch_scc1 L_B0b")
    I(f"""s_bfe_u32 s97, s5, 0x10003
s_xor_b32 s97, s97, 1
s_lshl_b32 s97, s97, 3
s_add_u32 s97, s97, s4
s_mul_i32 s99, s96, {64*2752}
s_cmp_ge_u32 s97, 11
s_cselect_b64 s[52:53], s[32:33], s[30:31]
s_cselect_b32 s12, 11, 0
s_sub_u32 s12, s97, s12
s_lshl_b32 s12, s12, 8
s_add_u32 s98, s99, s12
s_add_u32 s12, s97, 5
s_lshl_b32 s12, s12, 8
s_add_u32 s99, s99, s12
s_mov_b32 s54, {GUSZ}""")
    I(f"s_waitcnt vmcnt({2 if o['h1fast'] else 1})\ns_branch L_Hb2")

    QO = 8
    def a2prep():
        I(f"""v_xor_b32 v6, v2, v3
v_lshlrev_b32 v6, 4, v6
v_lshl_add_u32 v6, v3, 8, v6
s_lshl_b32 s15, s3, 13
v_add_u32 v6, s15, v6""")
        for ks in range(4):
            I(f"ds_read_b128 {vr(UK+4*ks)}, v6")
            if ks < 3: I(f"v_xor_b32 v6, {64*(ks ^ (ks+1))}, v6")
        I(f"v_bfe_u32 v30, v3, 2, 1\nv_mul_u32_u24 v30, 320, v30\nv_lshl_add_u32 v30, v2, 4, v30\nv_add_u32 v30, {L_QB}, v30")
        I(f"v_lshlrev_b32 v31, 16, v2\nv_lshl_add_u32 v31, v3, 2, v31\ns_lshl_b32 s14, s6, 11\ns_lshl_b32 s15, s7, 9\ns_add_u32 s14, s14, s15\ns_lshl_b32 s15, s3, 6\ns_add_u32 s14, s14, s15\ns_add_u32 s14, s14, {O_H2:#x}")
        I("s_and_b32 s15, s42, 0xffff\nv_mov_b32 v29, s15")
        I(f"v_mul_u32_u24 v166, {16*2752}, v2\nv_lshl_add_u32 v166, v3, 4, v166")
    L("L_Hpoll1")
    I(f"""v_subrev_u32 v5, 256, v0
v_lshlrev_b32 v4, 2, v5
s_lshl_b32 s10, s6, 13
s_add_u32 s10, s10, {O_H1 if o['h1fast'] else O_H1B:#x}
s_add_u32 s11, s10, 4096
v_lshrrev_b32 v6, 7, v5
v_mul_u32_u24 v6, 320, v6
v_bfe_u32 v12, v5, 2, 4
v_lshl_add_u32 v6, v12, 4, v6
v_bfe_u32 v12, v5, 6, 1
v_lshl_add_u32 v6, v12, 3, v6
v_and_b32 v5, 3, v5
v_lshl_add_u32 v5, v5, 1, v6
v_add_u32 v5, {L_QB}, v5
s_mov_b32 s12, 0
s_mov_b32 s13, 0xffffff00
s_barrier""")
    def h1loads():
        for p in range(8):
            I(f"buffer_load_dword v{12+p}, v4, {WS}, s{10+p//4} offen offset:{1024*(p%4)} sc1")
    I("s_waitcnt vmcnt(0)")
    TS(3)
    h1loads()
    a2prep()
    L("L_Hpoll1l")
    I("s_add_u32 s12, s12, 1")
    if o['h1fast']:
        I(f"s_cmp_eq_u32 s12, {o['fastn']}\ns_cselect_b32 s15, {O_H1B-O_H1:#x}, 0\ns_add_u32 s10, s10, s15\ns_add_u32 s11, s11, s15")
    I("s_waitcnt vmcnt(0)")
    tagcheck(20, range(12, 20), "s43")
    I(f"v_and_b32 v20, 0xff, v20\nv_cmp_ne_u32 vcc, 0, v20\ns_cbranch_vccz L_Hpoll1d\ns_cmp_gt_u32 s12, {SPIN}\ns_cbranch_scc1 L_Hpoll1d")
    h1loads()
    I("s_branch L_Hpoll1l")
    L("L_Hpoll1d")
    TS(5)
    if prof: I("s_mov_b32 s88, s12")
    if o['strip']:
        for p in range(8): I(f"v_and_b32 v{12+p}, s13, v{12+p}")
    I("v_add_f32 v12, v12, v13\nv_add_f32 v14, v14, v15\nv_add_f32 v16, v16, v17\nv_add_f32 v18, v18, v19\nv_add_f32 v12, v12, v14\nv_add_f32 v16, v16, v18\nv_add_f32 v12, v12, v16")
    I("v_cvt_pk_bf16_f32 v12, v12, v12\nds_write_b16 v5, v12")
    I("s_branch L_Hb3")
    L("L_Hb2")
    a2prep()
    L("L_Hb3")
    I("s_waitcnt lgkmcnt(0)\ns_barrier")
    for ks in range(4): I(f"ds_read_b128 {vr(QO+4*ks)}, v30 offset:{64*ks}")
    I("s_mov_b32 s11, 0xffff0000")
    for ks in range(4):
        I(f"s_waitcnt lgkmcnt({3-ks})")
        mfma(24, QO + 4 * ks, UK + 4 * ks, ks == 0)
    exec_set(0xffffffff, 0)
    I("v_cvt_pk_bf16_f32 v28, v24, v24\nv_and_or_b32 v28, v28, s11, v29")
    I(f"buffer_store_dword v28, v31, {WS}, s14 offen sc1")
    exec_all()
    TS(6)
    GW, GW2, GA, GC = 32, 168, 104, 112
    if o['glu']:
        I("s_cmp_lg_u32 s3, 0\ns_cbranch_scc1 L_Hng")
        for n in range(16):
            I(f"buffer_load_dwordx4 {vr(GW+4*n)}, v166, {SW}, s98 offen {nt1}")
            if n < 15: I("s_add_u32 s98, s98, 2752")
        I("s_cmp_ge_u32 s97, 6\ns_cbranch_scc1 L_Hng\ns_mov_b64 s[52:53], s[32:33]")
        for n in range(16):
            I(f"buffer_load_dwordx4 {vr(GW2+4*n)}, v166, {SW}, s99 offen {nt1}")
            if n < 15: I("s_add_u32 s99, s99, 2752")
        L("L_Hng")
        I("s_barrier")
        I("s_cmp_lg_u32 s3, 0\ns_cbranch_scc1 L_Hg2")
        I(f"s_lshl_b32 s12, s97, 3\ns_add_u32 s12, s12, s96\ns_lshl_b32 s12, s12, 10\ns_add_u32 s12, s12, {O_HG:#x}\ns_add_u32 s13, s12, {16*8*1024}\ns_mov_b32 s15, 0xffffff00\nv_mov_b32 v16, s43\nv_lshlrev_b32 v5, 4, v1")
        aop(0, GA)
        I("s_waitcnt vmcnt(0)")
        for n in range(16):
            if n < 15: aop(n + 1, GA)
            mfma(GC, GA + 4 * (n % 2), GW + 4 * n, n == 0)
            mfma(GC + 4, GA + 4 * (n % 2), GW2 + 4 * n, n == 0)
        for r in range(8): I(f"v_and_or_b32 v{GC+r}, v{GC+r}, s15, v16")
        I(f"buffer_store_dwordx4 {vr(GC)}, v5, {WS}, s12 offen sc1")
        I(f"s_cmp_ge_u32 s97, 6\ns_cbranch_scc1 L_Hg1\nbuffer_store_dwordx4 {vr(GC+4)}, v5, {WS}, s13 offen sc1")
        L("L_Hg1")
        TS(2)
        L("L_Hg2")
    DV = 160
    I("s_lshl_b32 s14, s6, 1\ns_add_u32 s14, s14, s8")
    I("s_and_b32 s98, s3, 3\ns_cmp_eq_u32 s98, 0\ns_cselect_b32 s98, 4, 0\ns_xor_b32 s98, s98, s3")
    I("s_cmp_lt_u32 s98, 4\ns_cbranch_scc1 L_Hc0\ns_barrier\nL_Hc0:")
    I("s_mov_b64 s[56:57], s[26:27]\ns_lshr_b32 s12, s98, 2\ns_and_b32 s13, s98, 1\ns_bitcmp1_b32 s98, 1\ns_cbranch_scc1 L_Hwo")
    I(f"""s_xor_b32 s12, s12, s9
s_lshl_b32 s12, s12, 1
s_add_u32 s13, s13, s12
v_and_b32 v{DV+4}, 1, v2
v_lshlrev_b32 v{DV+4}, 1, v{DV+4}
v_xor_b32 v{DV+4}, v{DV+4}, v3
v_lshlrev_b32 v{DV+5}, 13, v2
v_lshl_add_u32 v{DV+4}, v{DV+4}, 4, v{DV+5}
s_lshl_b32 s10, s8, 2
s_add_u32 s10, s10, s13
s_lshl_b32 s10, s10, 19
s_lshl_b32 s11, s6, 8
s_add_u32 s10, s10, s11
s_lshl_b32 s11, s13, 14
s_add_u32 s11, s11, {L_UV}""")
    def uvdma(pol):
        for n in range(16):
            I(f"s_mov_b32 m0, s11\ns_add_u32 s11, s11, 1024\nbuffer_load_dwordx4 v{DV+4}, {SV}, s10 offen {pol} lds\ns_add_u32 s10, s10, 0x8000")
            if n % 4 == 3 and n < 15: I(f"v_xor_b32 v{DV+4}, {64*((n//4) ^ (n//4+1))}, v{DV+4}")
    if nt2 != nt3:
        I("s_cmp_ge_u32 s98, 4\ns_cbranch_scc1 L_Huv2"); uvdma(nt2); I("s_branch L_Hprep\nL_Huv2:")
    uvdma(nt3)
    I("s_branch L_Hprep")
    L("L_Hwo")
    I(f"""s_xor_b32 s12, s12, s8
s_lshl_b32 s12, s12, 1
s_add_u32 s13, s13, s12
v_lshrrev_b32 v{DV+4}, 5, v1
v_and_b32 v{DV+5}, 31, v1
v_lshlrev_b32 v{DV}, 1, v{DV+4}
v_xor_b32 v{DV+5}, v{DV+5}, v{DV}
v_lshlrev_b32 v{DV+4}, 10, v{DV+4}
v_lshl_add_u32 v{DV}, v{DV+5}, 4, v{DV+4}
v_xor_b32 v{DV+1}, 0x40, v{DV}
v_xor_b32 v{DV+2}, 0x80, v{DV}
v_xor_b32 v{DV+3}, 0xc0, v{DV}
s_lshl_b32 s10, s6, 2
s_add_u32 s10, s10, s13
s_lshl_b32 s10, s10, 15
s_lshl_b32 s11, s9, 9
s_add_u32 s10, s10, s11
s_lshl_b32 s11, s13, 14
s_add_u32 s11, s11, {L_WO}""")
    def wodma(pol):
        for n in range(16):
            I(f"s_mov_b32 m0, s11\ns_add_u32 s11, s11, 1024\nbuffer_load_dwordx4 v{DV+n%4}, {SK}, s10 offen {pol} lds\ns_add_u32 s10, s10, 2048")
    if nt2 != nt3:
        I("s_cmp_ge_u32 s98, 4\ns_cbranch_scc1 L_Hwo2"); wodma(nt2); I("s_branch L_Hprep\nL_Hwo2:")
    wodma(nt3)
    L("L_Hprep")
    I("s_cmp_ge_u32 s98, 4\ns_cbranch_scc1 L_Hprep2\ns_barrier")
    L("L_Hprep2")
    UVO, WOO, OA = 32, 64, 104
    TA = 150
    I(f"""v_bfe_u32 v4, v1, 2, 2
v_and_b32 v6, 3, v1
v_and_b32 v5, 1, v2
v_lshl_add_u32 v5, v4, 1, v5
v_xor_b32 v{TA}, s3, v5
v_lshlrev_b32 v{TA}, 5, v{TA}
v_lshl_add_u32 v{TA}, v4, 12, v{TA}
v_lshl_add_u32 v{TA}, v2, 8, v{TA}
v_lshl_add_u32 v{TA}, v6, 3, v{TA}
v_lshrrev_b32 v4, 2, v1
v_and_b32 v5, 7, v4
s_lshl_b32 s10, s3, 1
v_xor_b32 v{TA+1}, s10, v5
v_lshlrev_b32 v{TA+1}, 5, v{TA+1}
v_lshl_add_u32 v{TA+1}, v4, 9, v{TA+1}
v_lshl_add_u32 v{TA+1}, v6, 3, v{TA+1}
v_add_u32 v{TA+1}, {L_WO}, v{TA+1}
v_xor_b32 v{TA+2}, 32, v{TA+1}""")
    I(f"""v_lshlrev_b32 v4, 11, v2
v_lshl_add_u32 v4, v3, 4, v4
s_lshl_b32 s10, s14, 15
s_bfe_u32 s11, s3, 0x10001
s_lshl_b32 s12, s11, 14
s_add_u32 s10, s10, s12
s_lshr_b32 s12, s3, 2
s_lshl_b32 s13, s12, 13
s_add_u32 s10, s10, s13
s_and_b32 s13, s3, 1
s_lshl_b32 s15, s13, 8
s_add_u32 s10, s10, s15
s_add_u32 s10, s10, {O_H3:#x}""")
    I(f"""s_lshl_b32 s15, s11, 1
s_add_u32 s15, s15, s12
s_lshl_b32 s15, s15, 6
s_add_u32 s15, s15, {L_CF}
v_lshl_add_u32 v5, v2, 4, s15
s_lshl_b32 s15, s11, 2
s_add_u32 s15, s15, {L_CF+256}
v_mov_b32 v6, s15""")
    I(f"""s_lshl_b32 s15, s12, 1
s_add_u32 s15, s15, s11
s_mul_i32 s15, s15, 576
s_lshl_b32 s13, s13, 8
s_add_u32 s15, s15, s13
s_add_u32 s15, s15, {L_CC}
v_lshlrev_b32 v7, 4, v3
v_lshl_add_u32 v7, v2, 3, v7
v_add_u32 v7, s15, v7""")
    I(f"v_and_b32 v12, 1, v3\nv_lshlrev_b32 v12, 4, v12\nv_mov_b32 v13, 0xffff\nv_lshlrev_b32 v12, v12, v13\nv_lshrrev_b32 v13, 1, v3")
    for r in range(4):
        I(f"v_cmp_eq_u32 vcc, {r}, v13\nv_cndmask_b32 v{8+r}, 0, v12, vcc")
    I(f"""v_and_b32 v12, 3, v3
v_mul_u32_u24 v12, 576, v12
v_lshl_add_u32 v12, v2, 4, v12
v_add_u32 v12, {L_CC}, v12
v_and_b32 v13, 1, v3
v_mul_u32_u24 v13, 320, v13
v_lshl_add_u32 v13, v2, 4, v13
s_lshr_b32 s15, s3, 1
s_lshl_b32 s15, s15, 6
s_and_b32 s13, s3, 1
s_lshl_b32 s13, s13, 3
s_add_u32 s15, s15, s13
s_add_u32 s15, s15, {L_CX}
v_add_u32 v13, s15, v13
v_bfe_u32 v14, v3, 2, 1
v_mul_u32_u24 v14, 320, v14
v_lshl_add_u32 v14, v2, 4, v14
v_add_u32 v14, {L_CX}, v14""")
    I(f"""v_mul_u32_u24 v15, {16*H5S}, v2
v_lshl_add_u32 v15, v3, 3, v15
s_lshl_b32 s11, s9, 3
s_add_u32 s11, s11, s3
s_mul_i32 s11, s11, {H5S}
s_lshl_b32 s13, s14, 7
s_add_u32 s11, s11, s13
s_add_u32 s11, s11, {O_H5:#x}""")
    I("s_waitcnt vmcnt(0)")
    TS(7)
    def trreads():
        for ks in range(8):
            for t in range(2):
                I(f"ds_read_b64_tr_b16 v[{UVO+4*ks+2*t}:{UVO+4*ks+2*t+1}], v{TA} offset:{(64*(ks//2)+8*t+4*(ks%2))*256}")
        for tau in range(2):
            for ks in range(4):
                for t in range(2):
                    oo = WOO + 16 * tau + 4 * ks + 2 * t
                    I(f"ds_read_b64_tr_b16 v[{oo}:{oo+1}], v{TA+1+tau} offset:{(32*ks+16*t)*512}")
    I("s_barrier")
    I("s_cmp_eq_u32 s3, 0\ns_cbranch_scc0 L_Hb4")
    I(f"""v_lshlrev_b32 v16, 9, v1
s_lshr_b32 s13, s6, 4
s_lshl_b32 s13, s13, 8
s_and_b32 s15, s6, 15
s_lshl_b32 s15, s15, 4
s_add_u32 s13, s13, s15
s_add_u32 s13, s13, {O_ST:#x}
s_mov_b32 s15, 0
buffer_load_dwordx4 v[20:23], v16, {WS}, s13 offen sc1""")
    L("L_Hb4")
    trreads()
    I("s_cmp_eq_u32 s3, 0\ns_cbranch_scc0 L_Hb4b")
    L("L_HpollS")
    I(f"""s_add_u32 s15, s15, 1
s_waitcnt vmcnt(0)
v_xor_b32 v17, s42, v21
v_bitop3_b32 v17, v17, v23, s42 bitop3:0xf6
v_cmp_ne_u32 vcc, 0, v17
s_cbranch_vccz L_HpollSd
s_cmp_gt_u32 s15, {SPIN}
s_cbranch_scc1 L_HpollSd
buffer_load_dwordx4 v[20:23], v16, {WS}, s13 offen sc1
s_branch L_HpollS""")
    L("L_HpollSd")
    TS(8)
    L("L_Hb4b")
    I("s_barrier")
    TS(9)
    PL = 116
    def payload():
        for n in range(4): I(f"buffer_load_dwordx4 {vr(PL+4*n)}, v4, {WS}, s10 offen offset:{512*n} sc1")
    payload()
    I("s_cmp_eq_u32 s3, 0\ns_cbranch_scc0 L_Hb5")
    I("v_mov_b32 v17, v20")
    for ctl in ("quad_perm:[1,0,3,2]", "quad_perm:[2,3,0,1]", "row_half_mirror", "row_mirror"): dpp("v_max_f32", 17, ctl)
    swap_red("v_max_f32", 17, 18, 16)
    I("v_sub_f32 v17, v20, v17\nv_exp_f32 v17, v17\nv_cvt_pk_bf16_f32 v17, v17, v17\nv_and_b32 v18, 0xffff0000, v17\nv_mul_f32 v18, v18, v22")
    I(f"v_lshlrev_b32 v19, 2, v1\nv_add_u32 v19, {L_CF}, v19\nds_write_b32 v19, v17")
    for ctl in ("quad_perm:[1,0,3,2]", "quad_perm:[2,3,0,1]", "row_half_mirror", "row_mirror"): dpp("v_add_f32", 18, ctl)
    swap_red("v_add_f32", 18, 17, 16)
    I(f"v_rcp_f32 v18, v18\nv_lshrrev_b32 v19, 5, v1\nv_lshlrev_b32 v19, 2, v19\nv_add_u32 v19, {L_CF+256}, v19\nds_write_b32 v19, v18\ns_waitcnt lgkmcnt(0)")
    L("L_Hb5")
    I("s_barrier")
    CA = 132
    I("ds_read_b128 v[16:19], v5\nds_read_b32 v20, v6\ns_waitcnt lgkmcnt(0)")
    for n in range(4):
        for r in range(4): I(f"v_and_b32 v{CA+4*n+r}, v{16+n}, v{8+r}")
    I("s_mov_b32 s15, 0")
    L("L_HpollP")
    I("s_waitcnt vmcnt(0)")
    I(f"v_max3_u32 v21, v{PL}, v{PL+1}, v{PL+2}")
    for i in range(3, 15, 2): I(f"v_max3_u32 v21, v21, v{PL+i}, v{PL+i+1}")
    I(f"v_max_u32 v21, v21, v{PL+15}\nv_cmp_eq_u32 vcc, -1, v21\ns_cbranch_vccz L_HpollPd\ns_add_u32 s15, s15, 1\ns_cmp_gt_u32 s15, {SPIN}\ns_cbranch_scc1 L_HpollPd")
    payload()
    I("s_branch L_HpollP")
    L("L_HpollPd")
    TS(10)
    if prof: I("s_add_u32 s90, s15, 1")
    for n in range(4): mfma(24, CA + 4 * n, PL + 4 * n, n == 0)
    exec_set(0xffffffff, 0)
    I("v_mul_f32 v24, v24, v20\nv_mul_f32 v25, v25, v20\nv_mul_f32 v26, v26, v20\nv_mul_f32 v27, v27, v20\nv_cvt_pk_bf16_f32 v24, v24, v25\nv_cvt_pk_bf16_f32 v25, v26, v27\nds_write_b64 v7, v[24:25]")
    exec_all()
    I("s_waitcnt lgkmcnt(0)\ns_barrier")
    CO = 116
    for ks in range(8): I(f"ds_read_b128 {vr(CO+4*ks)}, v12 offset:{64*ks}")
    for ks in range(8):
        I(f"s_waitcnt lgkmcnt({7-ks})")
        mfma(28, UVO + 4 * ks, CO + 4 * ks, ks == 0)
    for r in range(4): dpp("v_add_f32", 28 + r, "quad_perm:[2,3,0,1]")
    exec_set(0x00030003, 0x00030003)
    I("v_cvt_pk_bf16_f32 v28, v28, v29\nv_cvt_pk_bf16_f32 v29, v30, v31\nds_write_b64 v13, v[28:29]")
    exec_all()
    I("s_waitcnt lgkmcnt(0)\ns_barrier")
    for ks in range(4): I(f"ds_read_b128 {vr(CO+4*ks)}, v14 offset:{64*ks}")
    I("s_mov_b32 s15, 0xffffff00\nv_mov_b32 v16, s43")
    for ks in range(4):
        I(f"s_waitcnt lgkmcnt({3-ks})")
        for tau in range(2): mfma(OA + 4 * tau, CO + 4 * ks, WOO + 16 * tau + 4 * ks, ks == 0)
    exec_set(0xffffffff, 0)
    for tau in range(2): I(f"v_and_or_b32 v{18+tau}, v{OA+4*tau}, s15, v16")
    I(f"buffer_store_dwordx2 v[18:19], v15, {WS}, s11 offen sc1")
    exec_all()
    TS(11)
    I("s_branch L_fin")

    KO, VO, QR, QO2 = 32, 96, 176, 176
    def h2loads():
        I("s_mov_b32 s13, s12")
        for n in range(8):
            I(f"buffer_load_dwordx4 {vr(QR+4*n)}, v5, {WS}, s13 offen sc1")
            if n < 7: I("s_add_u32 s13, s13, 4096")
    def prepB():
        I(f"""v_lshlrev_b32 v4, 4, v1
v_and_b32 v10, 255, v0
v_lshlrev_b32 v5, 4, v10
s_lshl_b32 s12, s6, 1
s_add_u32 s12, s12, s8
s_lshl_b32 s12, s12, 15
s_add_u32 s12, s12, {O_H2:#x}
v_mul_u32_u24 v25, {CKS}, v3
v_lshl_add_u32 v25, v2, 4, v25
v_add_u32 v6, s9, v25
v_add_u32 v25, {L_QL}, v25
v_lshrrev_b32 v8, 2, v1
v_mul_u32_u24 v8, {CKS}, v8
v_and_b32 v9, 3, v1
v_lshl_add_u32 v8, v9, 3, v8
s_lshl_b32 s9, s5, 7
v_add_u32 v8, s9, v8
s_mul_i32 s9, s8, {64*CKS}
s_sub_u32 s11, {64*CKS}, s9
v_add_u32 v9, s11, v8
v_add_u32 v8, s9, v8
v_bfe_u32 v10, v0, 7, 1
v_mul_u32_u24 v10, {CKS}, v10
v_and_b32 v11, 127, v0
v_lshl_add_u32 v10, v11, 3, v10
v_add_u32 v10, {L_QL}, v10
v_lshlrev_b32 v28, 5, v3
v_add_u32 v28, {L_MX}, v28
s_lshl_b32 s9, s3, 2
v_add_u32 v11, s9, v28
v_add_u32 v30, {L_PB}, v4
s_lshr_b32 s9, s3, 1
s_lshl_b32 s9, s9, 10
s_and_b32 s11, s3, 1
s_lshl_b32 s11, s11, 3
s_add_u32 s9, s9, s11
v_add_u32 v29, s9, v30
v_lshrrev_b32 v31, 3, v3
v_lshl_add_u32 v31, v2, 2, v31
v_lshlrev_b32 v31, 16, v31
v_and_b32 v16, 7, v3
v_lshl_add_u32 v31, v16, 4, v31
s_lshl_b32 s98, s8, 20
s_lshr_b32 s9, s5, 2
s_lshl_b32 s9, s9, 15
s_add_u32 s98, s98, s9
s_lshl_b32 s9, s6, 14
s_add_u32 s98, s98, s9
s_lshl_b32 s9, s7, 9
s_add_u32 s98, s98, s9
s_and_b32 s9, s5, 3
s_lshl_b32 s9, s9, 7
s_add_u32 s98, s98, s9
s_add_u32 s98, s98, {O_H3:#x}
s_add_u32 s99, s98, 0x20000
s_lshl_b32 s11, s6, 5
s_add_u32 s11, s11, s7
s_lshl_b32 s11, s11, 1
s_add_u32 s11, s11, s8
s_lshl_b32 s11, s11, 8
s_add_u32 s11, s11, {O_ST:#x}
v_lshrrev_b32 v26, 5, v1
v_and_b32 v27, 31, v1
v_lshlrev_b32 v16, 1, v26
v_xor_b32 v27, v27, v16
v_lshlrev_b32 v26, 10, v26
v_lshl_add_u32 v26, v27, 4, v26
s_and_b32 s9, s3, 1
s_lshl_b32 s9, s9, 7
v_xor_b32 v26, s9, v26
v_xor_b32 v27, 0x40, v26
s_sub_u32 s15, s2, 170
s_lshr_b32 s97, s15, 1
s_lshl_b32 s97, s97, 3
s_add_u32 s97, s97, s3
s_lshl_b32 s97, s97, 12
s_and_b32 s9, s15, 1
s_lshl_b32 s9, s9, 9
s_add_u32 s97, s97, s9
s_mov_b64 s[52:53], s[34:35]
s_mov_b32 s54, {GUSZ}
v_mov_b32 v12, -1
v_mov_b32 v13, -1
v_mov_b32 v14, -1
v_mov_b32 v15, -1
v_mov_b32 v17, 0x07060302""")
    def clean():
        I(f"buffer_store_dwordx4 v[12:15], v31, {WS}, s98 offen sc1\nbuffer_store_dwordx4 v[12:15], v31, {WS}, s99 offen sc1")
    def kreads():
        for ks in range(16): I(f"ds_read_b128 {vr(KO+4*ks)}, v6 offset:{64*ks}")
    def vreads(ksp):
        for tau in range(4):
            for t in range(2):
                oo = VO + 16 * tau + 4 * ksp + 2 * t
                I(f"ds_read_b64_tr_b16 v[{oo}:{oo+1}], v{8+ksp//2} offset:{(32*(ksp%2)+16*t)*CKS+32*tau}")
    L("L_B0b")
    ckdma(12, nt2)
    I("s_barrier")
    prepB()
    if o['cleanpos'] == 0: clean()
    I("s_branch L_B2")
    L("L_B1")
    if o['ukpf']:
        I(f"""s_cmp_lt_u32 s3, 4
s_cbranch_scc1 L_Bnuk
s_mov_b64 s[52:53], s[22:23]
s_lshl_b32 s11, s3, 17
s_add_u32 s11, s11, s97
v_lshrrev_b32 v8, 2, v1
v_lshlrev_b32 v8, 13, v8
v_and_b32 v9, 3, v1
v_lshl_add_u32 v8, v9, 6, v8
buffer_load_dword v236, v8, {SW}, s11 offen
L_Bnuk:""")
    I("s_waitcnt lgkmcnt(0)\ns_add_u32 s42, s42, 1\ns_and_b32 s43, s42, 0xff")
    if o['nearly'] == 0 or True:
        prepB()
        if o['cleanpos'] == 0: clean()
    I("s_cmp_ge_u32 s3, 4\ns_cbranch_scc1 L_B1w")
    I(f"s_cmp_le_u32 s3, {o['nearly']}\ns_cbranch_scc1 L_B1b\ns_barrier")
    L("L_B1b")
    ckdma(16, nt2)
    I(f"s_cmp_le_u32 s3, {o['nearly']}\ns_cbranch_scc0 L_B1c\ns_barrier")
    L("L_B1c")
    I("s_barrier")
    L("L_B2")
    I("s_barrier")
    h2loads()
    I("s_waitcnt vmcnt(8)")
    TS(11)
    kreads()
    I("s_barrier")
    vreads(0); vreads(1)
    I("s_mov_b32 s9, 0")
    L("L_Bpoll")
    for n in range(8):
        I(f"s_waitcnt vmcnt({7-n})")
        tagcheck(16, range(QR + 4 * n, QR + 4 * n + 4), "s42", n == 0)
    I(f"v_and_b32 v16, 0xffff, v16\nv_cmp_ne_u32 vcc, 0, v16\ns_cbranch_vccz L_Bpolld\ns_add_u32 s9, s9, 1\ns_cmp_gt_u32 s9, {SPIN}\ns_cbranch_scc1 L_Bpolld")
    h2loads()
    I("s_branch L_Bpoll")
    L("L_Bpolld")
    TS(5)
    if prof: I("s_add_u32 s88, s9, 1")
    for n in range(8):
        I(f"v_perm_b32 v{QR+4*n}, v{QR+4*n+1}, v{QR+4*n}, v17\nv_perm_b32 v{QR+4*n+1}, v{QR+4*n+3}, v{QR+4*n+2}, v17")
        I(f"ds_write_b64 v10, v[{QR+4*n}:{QR+4*n+1}] offset:{2*CKS*n}")
    I("s_waitcnt lgkmcnt(0)\ns_barrier\ns_branch L_B5")
    L("L_B1w")
    I("s_barrier\ns_barrier\ns_cmp_lt_u32 s3, 6\ns_cbranch_scc1 L_B1x\ns_barrier")
    L("L_B1x")
    ckdma(16, nt3)
    I("s_cmp_lt_u32 s3, 6\ns_cbranch_scc0 L_B1y\ns_barrier")
    L("L_B1y")
    I("s_barrier")
    vreads(0); vreads(1)
    if o['late67']:
        I("s_cmp_lt_u32 s3, 6\ns_cbranch_scc1 L_B1z\ns_barrier")
        L("L_B1z")
    I("s_waitcnt vmcnt(0)")
    TS(11)
    kreads()
    if o['late67']: I("s_waitcnt lgkmcnt(0)\ns_cmp_lt_u32 s3, 6\ns_cbranch_scc0 L_B5\ns_barrier")
    else: I("s_waitcnt lgkmcnt(0)\ns_barrier")
    L("L_B5")
    TS(10)
    if o['cleanpos'] == 1: clean()
    for ks in range(15): I(f"ds_read_b128 {vr(QO2+4*ks)}, v25 offset:{64*ks}")
    for ks in range(16):
        if ks == 1: I(f"ds_read_b128 {vr(QO2+60)}, v25 offset:{64*15}")
        I(f"s_waitcnt lgkmcnt({14 if ks == 0 else 15-ks})")
        mfma(16, KO + 4 * ks, QO2 + 4 * ks, ks == 0)
    vreads(2)
    kappa = (128 ** -0.5) * math.log2(math.e)
    if o['score_mimic']:
        I(f"s_mov_b32 s9, 0xffff0000\ns_mov_b32 s12, {f32(128 ** -0.5)}")
        for rep in range(2):
            I("v_cvt_pk_bf16_f32 v20, v16, v17\nv_cvt_pk_bf16_f32 v21, v18, v19\nv_lshlrev_b32 v16, 16, v20\nv_and_b32 v17, s9, v20\nv_lshlrev_b32 v18, 16, v21\nv_and_b32 v19, s9, v21")
            if rep == 0:
                for r in range(4): I(f"v_mul_f32 v{16+r}, s12, v{16+r}")
        kappa = math.log2(math.e)
    I(f"s_mov_b32 s9, {f32(kappa)}")
    I("v_max3_f32 v20, v16, v17, v18\nv_max_f32 v20, v20, v19")
    swap_red("v_max_f32", 20, 21, 16)
    swap_red("v_max_f32", 20, 21, 32)
    I("ds_write_b32 v11, v20\ns_waitcnt lgkmcnt(0)\ns_barrier")
    I("ds_read_b128 v[20:23], v28\nds_read_b128 v[12:15], v28 offset:16")
    vreads(3)
    I("s_waitcnt lgkmcnt(9)\nv_max3_f32 v20, v20, v21, v22\nv_max_f32 v20, v20, v23\ns_waitcnt lgkmcnt(8)\nv_max3_f32 v20, v20, v12, v13\nv_max3_f32 v20, v20, v14, v15")
    I("v_mul_f32 v20, s9, v20")
    for r in range(4): I(f"v_fma_f32 v{16+r}, v{16+r}, s9, -v20")
    for r in range(4): I(f"v_exp_f32 v{16+r}, v{16+r}")
    I("v_cvt_pk_bf16_f32 v16, v16, v17\nv_cvt_pk_bf16_f32 v17, v18, v19\nds_write_b64 v29, v[16:17]\ns_waitcnt vmcnt(0) lgkmcnt(0)\ns_barrier")
    TS(6)
    PO, OC = 160, 176
    for ks in range(4): I(f"ds_read_b128 {vr(PO+4*ks)}, v30 offset:{1024*ks}")
    I("s_cmp_eq_u32 s3, 2\ns_cbranch_scc0 L_Bpv")
    for r in range(4): I(f"v_mov_b32 v{12+r}, 0x3f803f80")
    I("v_mov_b32 v21, s42\nv_mov_b32 v23, s42\ns_waitcnt lgkmcnt(0)")
    for ks in range(4): mfma(16, 12, PO + 4 * ks, ks == 0)
    exec_set(0xffff, 0)
    I(f"v_mov_b32 v22, v16\nbuffer_store_dwordx4 v[20:23], v4, {WS}, s11 offen sc1")
    exec_all()
    L("L_Bpv")
    I("v_mov_b32 v24, -2")
    for ks in range(4):
        I(f"s_waitcnt lgkmcnt({3-ks})")
        for tau in range(4): mfma(OC + 4 * tau, PO + 4 * ks, VO + 16 * tau + 4 * ks, ks == 0)
    for rho in range(2):
        T = 192 + 8 * rho; O = T + 4
        for e in range(2):
            r = 2 * rho + e
            I(f"v_cvt_pk_bf16_f32 v{T+2*e}, v{OC+r}, v{OC+4+r}\nv_cvt_pk_bf16_f32 v{T+2*e+1}, v{OC+8+r}, v{OC+12+r}")
        for i in range(4): I(f"v_min_u32 v{O+i}, v{T+i}, v24")
        for i in range(2):
            I(f"v_min_u32_dpp v{O+i}, v{T+2+i}, v24 row_ror:8 row_mask:0xf bank_mask:0xc")
            I(f"v_min_u32_dpp v{O+2+i}, v{T+i}, v24 row_ror:8 row_mask:0xf bank_mask:0x3")
        I(f"buffer_store_dwordx4 {vr(O)}, v31, {WS}, s{98+rho} offen sc1")
    TS(7)
    if o['glu']:
        I("s_cmp_lt_i32 s15, 0\ns_cbranch_scc1 L_D")
        I(f"s_lshl_b32 s9, s3, 11\ns_add_u32 s9, s9, {L_DN}\ns_mov_b32 m0, s9\ns_add_u32 s9, s9, 1024\nbuffer_load_dwordx4 v26, {SW}, s97 offen {nt1} lds\ns_mov_b32 m0, s9\ns_add_u32 s97, s97, 2048\nbuffer_load_dwordx4 v27, {SW}, s97 offen {nt1} lds")
        DNO, HO, OB = 32, 40, 44
        I(f"""v_lshrrev_b32 v5, 2, v1
v_and_b32 v6, 7, v5
s_lshl_b32 s10, s3, 1
v_xor_b32 v6, s10, v6
v_lshlrev_b32 v6, 5, v6
v_lshl_add_u32 v6, v5, 9, v6
v_and_b32 v5, 3, v1
v_lshl_add_u32 v6, v5, 3, v6
v_add_u32 v6, {L_DN}, v6
v_xor_b32 v7, 32, v6""")
        I(f"""v_bfe_u32 v8, v3, 2, 1
v_lshlrev_b32 v8, 7, v8
v_lshl_add_u32 v8, v2, 4, v8
v_add_u32 v8, {L_HB}, v8
v_mul_u32_u24 v15, {16*H5S}, v2
v_lshl_add_u32 v15, v3, 3, v15
s_and_b32 s14, s15, 1
s_lshl_b32 s14, s14, 3
s_add_u32 s14, s14, s3
s_mul_i32 s14, s14, {H5S}
s_lshr_b32 s15, s15, 1
s_lshl_b32 s13, s15, 7
s_add_u32 s14, s14, s13
s_add_u32 s14, s14, {O_H5+64*128:#x}""")
        I("s_cmp_eq_u32 s3, 1\ns_cbranch_scc0 L_G3")
        I(f"""v_lshlrev_b32 v4, 8, v2
v_lshl_add_u32 v4, v3, 2, v4
s_lshr_b32 s10, s15, 2
s_lshl_b32 s10, s10, 13
s_and_b32 s11, s15, 3
s_lshl_b32 s11, s11, 6
s_add_u32 s10, s10, s11
s_add_u32 s10, s10, {O_HG:#x}
s_add_u32 s11, s10, 4096
s_add_u32 s12, s10, {88*1024}
s_add_u32 s13, s12, 4096
v_bfe_u32 v5, v1, 2, 1
v_lshlrev_b32 v5, 4, v5
v_bfe_u32 v14, v1, 4, 1
v_lshl_add_u32 v5, v14, 3, v5
v_bfe_u32 v14, v1, 3, 1
v_lshl_add_u32 v5, v14, 2, v5
v_and_b32 v14, 3, v1
v_add_u32 v5, v5, v14
v_lshlrev_b32 v5, 1, v5
v_lshrrev_b32 v14, 5, v1
v_lshl_add_u32 v5, v14, 7, v5
v_add_u32 v5, {L_HB}, v5
s_mov_b32 s9, 0""")
        L("L_GpollG")
        for p in range(16):
            I(f"buffer_load_dword v{64+p}, v4, {WS}, s{10+p//4} offen offset:{1024*(p%4)} sc1")
        I("s_add_u32 s9, s9, 1\ns_waitcnt vmcnt(0)")
        tagcheck(16, range(64, 80), "s43")
        I(f"v_and_b32 v16, 0xff, v16\nv_cmp_ne_u32 vcc, 0, v16\ns_cmp_gt_u32 s9, {SPIN}\ns_cbranch_scc1 L_GpollGd\ns_cbranch_vccnz L_GpollG")
        L("L_GpollGd")
        TS(3)
        if o['strip']:
            I("s_mov_b32 s9, 0xffffff00")
            for p in range(16): I(f"v_and_b32 v{64+p}, s9, v{64+p}")
        for b0 in (64, 72):
            I(f"v_add_f32 v{b0}, v{b0}, v{b0+1}\nv_add_f32 v{b0+2}, v{b0+2}, v{b0+3}\nv_add_f32 v{b0+4}, v{b0+4}, v{b0+5}\nv_add_f32 v{b0+6}, v{b0+6}, v{b0+7}\nv_add_f32 v{b0}, v{b0}, v{b0+2}\nv_add_f32 v{b0+4}, v{b0+4}, v{b0+6}\nv_add_f32 v{b0}, v{b0}, v{b0+4}")
        I(f"""v_cvt_pk_bf16_f32 v16, v64, v72
v_and_b32 v17, 0xffff0000, v16
v_lshlrev_b32 v16, 16, v16
v_mul_f32 v16, {f32(-math.log2(math.e))}, v16
v_exp_f32 v16, v16
v_add_f32 v16, 1.0, v16
v_rcp_f32 v16, v16
v_cvt_pk_bf16_f32 v16, v16, v16
v_lshlrev_b32 v16, 16, v16
v_mul_f32 v16, v16, v17
v_cvt_pk_bf16_f32 v16, v16, v16
ds_write_b16 v5, v16""")
        L("L_G3")
        I(f"s_waitcnt vmcnt(0) lgkmcnt(0)\ns_barrier\nds_read_b128 {vr(HO)}, v8")
        for tau in range(2):
            for t in range(2):
                oo = DNO + 4 * tau + 2 * t
                I(f"ds_read_b64_tr_b16 v[{oo}:{oo+1}], v{6+tau} offset:{16*t*512}")
        I("s_mov_b32 s9, 0xffffff00\nv_mov_b32 v16, s43\ns_waitcnt lgkmcnt(0)")
        for tau in range(2): mfma(OB + 4 * tau, HO, DNO + 4 * tau, True)
        exec_set(0xffffffff, 0)
        for tau in range(2): I(f"v_and_or_b32 v{18+tau}, v{OB+4*tau}, s9, v16")
        I(f"buffer_store_dwordx2 v[18:19], v15, {WS}, s14 offen sc1")
        exec_all()
        if prof: I("s_memrealtime s[72:73]")
        I("s_branch L_fin")
    L("L_D")
    I("s_cmp_lg_u32 s3, 0\ns_cbranch_scc1 L_fin\ns_cmp_ge_u32 s2, 160\ns_cbranch_scc1 L_fin")
    I(f"""s_sub_u32 s9, s2, 128
s_mul_i32 s10, s9, {H5S}
s_add_u32 s10, s10, {O_H5:#x}
s_add_u32 s13, s10, 4096
s_add_u32 s14, s10, 8192
s_add_u32 s15, s10, 12288
s_lshl_b32 s11, s9, 6
v_and_b32 v5, 7, v1
v_lshlrev_b32 v5, 2, v5
buffer_load_dword v6, v5, {SX}, s11 offen
buffer_load_dword v7, v5, {SX}, s11 offen offset:32
s_mov_b32 s9, 0xffffff00
s_mov_b32 s12, 0""")
    def pk(a, b): I(f"v_pk_add_f32 v[{a}:{a+1}], v[{a}:{a+1}], v[{b}:{b+1}]")
    if o['glu']:
        for i in range(4): I(f"v_mov_b32 v{84+i}, s43")
        L("L_DpollG")
        for n in range(5): I(f"buffer_load_dwordx4 {vr(64+4*n)}, v4, {WS}, s{14 if n < 4 else 15} offen offset:{1024*(n%4)} sc1")
        exec_set(0xffffff, 0)
        I(f"buffer_load_dwordx4 {vr(84)}, v4, {WS}, s15 offen offset:1024 sc1")
        exec_all()
        I("s_add_u32 s12, s12, 1")
        for n in range(6):
            I(f"s_waitcnt vmcnt({5-n})")
            tagcheck(8, range(64 + 4 * n, 68 + 4 * n), "s43", n == 0)
        I(f"v_and_b32 v8, 0xff, v8\nv_cmp_ne_u32 vcc, 0, v8\ns_cmp_gt_u32 s12, {SPIN}\ns_cbranch_scc1 L_DpollGd\ns_cbranch_vccnz L_DpollG")
        L("L_DpollGd")
        TS(3)
        if o['strip']:
            for p in range(64, 88): I(f"v_and_b32 v{p}, s9, v{p}")
        for h in (0, 2):
            pk(64 + h, 68 + h); pk(72 + h, 76 + h); pk(80 + h, 84 + h); pk(64 + h, 72 + h); pk(64 + h, 80 + h)
    L("L_Dpoll")
    for n in range(8): I(f"buffer_load_dwordx4 {vr(32+4*n)}, v4, {WS}, s{10 if n < 4 else 13} offen offset:{1024*(n%4)} sc1")
    I("s_add_u32 s12, s12, 1")
    for n in range(8):
        I(f"s_waitcnt vmcnt({7-n})")
        tagcheck(8, range(32 + 4 * n, 36 + 4 * n), "s43", n == 0)
    I(f"v_and_b32 v8, 0xff, v8\nv_cmp_ne_u32 vcc, 0, v8\ns_cmp_gt_u32 s12, {SPIN}\ns_cbranch_scc1 L_Dpolld\ns_cbranch_vccnz L_Dpoll")
    L("L_Dpolld")
    TS(8)
    if o['strip']:
        for p in range(32, 64): I(f"v_and_b32 v{p}, s9, v{p}")
    for st in (4, 8, 16):
        for base in range(32, 64, 2 * st):
            pk(base, base + st); pk(base + 2, base + st + 2)
    if o['glu']:
        for h in (0, 2): pk(32 + h, 64 + h)
    for r in range(4): dpp("v_add_f32", 32 + r, "row_ror:8")
    for which in (16, 32):
        for r in range(4): I(f"v_mov_b32 v{36+r}, v{32+r}")
        for r in range(4): I(f"v_permlane{which}_swap_b32 v{32+r}, v{36+r}")
        for r in range(4): I(f"v_add_f32 v{32+r}, v{32+r}, v{36+r}")
    I("v_lshlrev_b32 v36, 16, v6\nv_and_b32 v38, 0xffff0000, v6\nv_lshlrev_b32 v37, 16, v7\nv_and_b32 v39, 0xffff0000, v7")
    for r in range(4): I(f"v_add_f32 v{32+r}, v{32+r}, v{36+r}")
    I("v_cvt_pk_bf16_f32 v32, v32, v34\nv_cvt_pk_bf16_f32 v33, v33, v35")
    exec_set(0xff, 0)
    I(f"buffer_store_dword v32, v5, {SK}, s11 offen\nbuffer_store_dword v33, v5, {SK}, s11 offen offset:32")
    I("s_cmp_lg_u32 s2, 128\ns_cbranch_scc1 L_Dend")
    exec_set(1, 0)
    I(f"v_mov_b32 v8, s42\nv_mov_b32 v9, 0\nbuffer_store_dword v8, v9, {WS}, 0 offen offset:{O_EP} sc1")
    if o['hold']:
        if o['henc'] >= 0:
            I(f"s_waitcnt lgkmcnt(0)\ns_sub_u32 s94, s{64+2*o['henc']}, s92\ns_lshl_b32 s94, s94, 2\ns_add_u32 s92, s92, s94")
        I(f"s_add_u32 s92, s92, {o['hold']}\nL_hold:\ns_memrealtime s[94:95]\ns_waitcnt lgkmcnt(0)\ns_sub_u32 s94, s94, s92\ns_cmp_lt_i32 s94, 0\ns_cbranch_scc1 L_hold")
    L("L_Dend")
    exec_all()
    TS(9)
    L("L_fin")
    if prof:
        I(f"s_waitcnt lgkmcnt(0)\ns_lshl_b32 s9, s2, 3\ns_add_u32 s9, s9, s3\ns_lshl_b32 s9, s9, 6\ns_add_u32 s9, s9, {O_TS:#x}\nv_mov_b32 v9, 0")
        exec_set(1, 0)
        for k in range(16):
            I(f"v_mov_b32 v8, s{64+2*k}\nbuffer_store_dword v8, v9, {WS}, s9 offen offset:{4*k}")
    L("L_end")
    I("s_endpgm")

    src = f"""; fused single-launch MLA(absorbed) decode attention + GLU, generated by gen/gen.py
; @launch grid=(256,1,1) block=(512,1,1) lds={LDS_BYTES}
.amdgcn_target "amdgcn-amd-amdhsa--gfx950"
.text
.globl {KNAME}
.p2align 8
.type {KNAME},@function
{KNAME}:
""" + A.text() + f""".section .rodata,"a"
.p2align 6
.amdhsa_kernel {KNAME}
  .amdhsa_next_free_vgpr 256
  .amdhsa_next_free_sgpr 100
  .amdhsa_accum_offset 256
  .amdhsa_group_segment_fixed_size 0
  .amdhsa_kernarg_size 104
  .amdhsa_user_sgpr_count 2
  .amdhsa_user_sgpr_kernarg_segment_ptr 1
  .amdhsa_system_sgpr_workgroup_id_x 1
.end_amdhsa_kernel
"""
    return src

if __name__ == "__main__":
    out = "parallel_sum__compressed_kv_cla__glu_gated_glu__decode.s"
    kw = {}
    for a in sys.argv[1:]:
        k, v = a.split("=", 1)
        if k == "o": out = v
        elif k.startswith("nt"): kw[k] = v
        else: kw[k] = int(v)
    open(out, "w").write(gen(**kw))
```

```python
import sys, struct, math
from asmlib import Asm

KNAME = "parallel_sum__compressed_kv_cla__glu_gated_glu__decode_kernel"
O_EP, O_H1, O_HG, O_H2, O_ST, O_H4, O_H3, O_H5, O_TS = 0, 0x10000, 0x50000, 0x80000, 0xA0000, 0xC0000, 0x100000, 0xE0000, 0x400000
D_SLOW = 0x300000
O_H1B = O_H1 + D_SLOW
O_FL = 0xB0000
WSSZ = 0x800000
GUSZ = 512 * 1376 * 2
CKS = 1056
L_CK, L_QL, L_PB, L_MX, L_HB, L_CX = 0, 135168, 152064, 156160, 156672, 157184
L_WO = 0
L_UV, L_QB, L_CF, L_CC = 65536, 147456, 148096, 148480
LDS_BYTES = 157952
SPIN = 20000

def f32(x): return "0x%08x" % struct.unpack("<I", struct.pack("<f", x))[0]
def vr(a, n=4): return f"v[{a}:{a+n-1}]"

DEF = dict(prof=0, ln_mimic=1, score_mimic=0, pf=1, h1fast=1, fastn=12, hold=0, henc=-1,
           nt1="", nt2="", nt3="",
           nearly=0, h1touch=1, cleanpos=1, glu=1, axor=2, strip=1, ukpf=1, fastn4=48, wopf=1, hdelay=0, prio=0, gate=16, bwo=1, dnpf=1, dkbal=1)

def gen(**kw):
    o = dict(DEF); o.update(kw)
    prof = o['prof']; nt1, nt2, nt3 = o['nt1'], o['nt2'], o['nt3']
    A = Asm(); I = A.I; L = A.L; C = A.C
    def TS(k):
        if prof or o['henc'] == k: I(f"s_memrealtime s[{64+2*k}:{65+2*k}]")
    def exec_set(lo, hi):
        I(f"s_mov_b32 exec_lo, {lo:#x}\ns_mov_b32 exec_hi, {hi:#x}")
    def exec_all(): I("s_mov_b64 exec, -1")
    def swap_red(op, v, t, which):
        I(f"v_mov_b32 v{t}, v{v}\nv_permlane{which}_swap_b32 v{v}, v{t}\n{op} v{v}, v{v}, v{t}")
    def dpp(op, v, ctl): I(f"{op}_dpp v{v}, v{v}, v{v} {ctl} row_mask:0xf bank_mask:0xf")
    def mfma(d, a, b, first): I(f"v_mfma_f32_16x16x32_bf16 {vr(d)}, {vr(a)}, {vr(b)}, {'0' if first else vr(d)}")
    def tagcheck(acc, regs, tag, first=True):
        for i, r in enumerate(regs):
            if first and i == 0: I(f"v_xor_b32 v{acc}, {tag}, v{r}")
            else: I(f"v_bitop3_b32 v{acc}, v{acc}, v{r}, {tag} bitop3:0xf6")
    WS, SX, SW, SK, SV = "s[44:47]", "s[48:51]", "s[52:55]", "s[56:59]", "s[60:63]"
    XS, XC, WR, UK = 8, 16, 24, 88
    F, T0, T1, T2, T3, AOP, ACC, G = 112, 128, 129, 130, 131, 132, 140, 144
    XP, SEL = 240, 248

    TS(0)
    if o['hold']: I("s_memrealtime s[92:93]")
    I("s_load_dwordx16 s[16:31], s[0:1], 0\ns_load_dwordx8 s[32:39], s[0:1], 64\ns_load_dwordx2 s[40:41], s[0:1], 96")
    I("s_cmp_ge_u32 s2, 256\ns_cbranch_scc1 L_end")
    I("v_lshrrev_b32 v4, 6, v0\nv_and_b32 v1, 63, v0\nv_readfirstlane_b32 s3, v4\nv_lshrrev_b32 v2, 4, v1\nv_and_b32 v3, 15, v1")
    I(f"s_mov_b32 s46, {WSSZ:#x}\ns_mov_b32 s47, 0x20000\ns_mov_b32 s50, 2048\ns_mov_b32 s51, 0x20000\ns_mov_b32 s54, 0x400000\ns_mov_b32 s55, 0x20000\ns_mov_b32 s59, 0x20000\ns_mov_b32 s63, 0x20000")
    if prof:
        for k in range(1, 16): I(f"s_mov_b32 s{64+2*k}, 0")
    I("""s_and_b32 s4, s2, 7
s_lshr_b32 s5, s2, 3
s_bfe_u32 s15, s5, 0x20002
s_and_b32 s7, s5, 3
s_lshr_b32 s96, s5, 4
s_xor_b32 s96, s96, s15
s_and_b32 s96, s96, 1
s_lshl_b32 s96, s96, 2
s_add_u32 s96, s96, s7
s_lshl_b32 s6, s4, 2
s_add_u32 s6, s6, s15""")
    I("s_cmp_lg_u32 s3, 0\ns_cbranch_scc1 L_not0")
    I(f"""s_cmp_lt_u32 s2, 128
s_cselect_b32 s10, {o['axor']}, 0
s_xor_b32 s10, s10, s6
s_lshl_b32 s13, s10, 3
s_add_u32 s13, s13, s96
s_lshl_b32 s13, s13, 10
s_lshl_b32 s11, s96, 19
s_lshl_b32 s10, s10, 8
s_add_u32 s11, s11, s10
s_lshl_b32 s12, s96, 7
v_lshrrev_b32 v8, 3, v3
v_lshlrev_b32 v8, 10, v8
v_lshl_add_u32 v5, v2, 5, v8
v_and_b32 v9, 7, v1
v_lshl_add_u32 v9, v2, 3, v9
v_lshl_add_u32 v4, v9, 4, v8
v_lshlrev_b32 v6, 17, v2
v_lshl_add_u32 v6, v3, 4, v6""")
    I("s_waitcnt lgkmcnt(0)\ns_mov_b64 s[48:49], s[16:17]\ns_mov_b64 s[52:53], s[20:21]")
    I(f"buffer_load_dwordx4 {vr(XS)}, v4, {SX}, 0 offen\nbuffer_load_dwordx4 {vr(XS+4)}, v4, {SX}, 0 offen offset:512")
    I(f"buffer_load_dwordx4 {vr(XC)}, v5, {SX}, s12 offen\nbuffer_load_dwordx4 {vr(XC+4)}, v5, {SX}, s12 offen offset:16")
    for n in range(16):
        I(f"buffer_load_dwordx4 {vr(WR+4*n)}, v6, {SW}, s11 offen {nt1}")
        if n < 15: I(f"s_add_u32 s11, s11, 8192")
    I("s_branch L_c1")
    L("L_not0")
    if o['pf']:
        I("s_cmp_lg_u32 s3, 7\ns_cbranch_scc1 L_nopf\ns_getpc_b64 s[8:9]")
        L("L_pc")
        I("v_and_b32 v4, 7, v1\nv_lshlrev_b32 v4, 6, v4\ns_lshl_b32 s10, s5, 9\nv_add_u32 v4, s10, v4\nv_min_u32 v5, L_end-L_pc, v4\nglobal_load_dword v232, v5, s[8:9]")
        L("L_nopf")
    I("s_waitcnt lgkmcnt(0)\ns_mov_b64 s[48:49], s[16:17]\ns_mov_b64 s[52:53], s[20:21]")
    L("L_c1")
    I(f"s_mov_b64 s[44:45], s[40:41]\ns_load_dword s42, s[40:41], {O_EP}")
    if o['dkbal']:
        I("s_and_b32 s28, s6, 3\ns_lshl_b32 s29, s28, 3\ns_add_u32 s29, s29, s4\ns_lshl_b32 s8, s4, 1\ns_sub_u32 s8, 28, s8\ns_add_u32 s8, s8, s28\ns_cmp_lt_u32 s28, 2\ns_cselect_b32 s29, s29, s8")
    else:
        I("s_mov_b32 s29, s6")
    TS(1)
    I("s_cmp_ge_u32 s2, 128\ns_cbranch_scc1 L_B0")
    I("s_mov_b64 s[56:57], s[22:23]\ns_mov_b32 s58, 0x400000\ns_mov_b64 s[60:61], s[24:25]\ns_mov_b32 s62, 0x400000\ns_lshr_b32 s8, s7, 1\ns_and_b32 s9, s7, 1")
    I(f"""v_xor_b32 v7, v3, v2
v_lshlrev_b32 v7, 4, v7
v_lshl_add_u32 v7, v2, 13, v7
s_lshl_b32 s15, s7, 3
s_add_u32 s15, s15, s3
s_lshl_b32 s15, s15, 17
s_lshl_b32 s11, s6, 8
s_add_u32 s15, s15, s11
s_lshl_b32 s11, s3, 13
s_barrier""")
    if o['h1touch']:
        I(f"s_cmp_lg_u32 s3, 1\ns_cbranch_scc1 L_Hnt\nv_lshlrev_b32 v4, 5, v1\ns_lshl_b32 s10, s6, 2\ns_add_u32 s10, s10, s7\ns_lshl_b32 s10, s10, 11\ns_add_u32 s10, s10, {O_H1 if o['h1fast'] else O_H1B:#x}\nbuffer_load_dword v237, v4, {WS}, s10 offen sc1\nL_Hnt:")
    if o['gate']:
        I(f"s_cmp_lg_u32 s3, 2\ns_cbranch_scc1 L_Hnf\nv_mov_b32 v4, 0\ns_lshl_b32 s10, s2, 7\ns_add_u32 s10, s10, {O_FL:#x}\nbuffer_load_dword v237, v4, {WS}, s10 offen sc1\nL_Hnf:")
    for n in range(4):
        I(f"s_mov_b32 m0, s11\ns_add_u32 s11, s11, 1024\nbuffer_load_dwordx4 v7, {SK}, s15 offen {nt1} lds\ns_add_u32 s15, s15, 0x8000")
        if n < 3: I(f"v_xor_b32 v7, {64*(n ^ (n+1))}, v7")
    I("s_waitcnt lgkmcnt(0)\ns_add_u32 s42, s42, 1\ns_and_b32 s43, s42, 0xff")
    I("s_cmp_eq_u32 s3, 0\ns_cbranch_scc1 L_A1\ns_cmp_ge_u32 s3, 4\ns_cbranch_scc1 L_Hpoll1\ns_barrier\ns_waitcnt vmcnt(0)")
    TS(3)
    I("s_branch L_Hb2")
    L("L_B0")
    I(f"""s_mov_b32 s100, s6
s_mov_b32 s101, s7
s_lshl_b32 s97, s7, 20
s_lshl_b32 s8, s6, 8
s_add_u32 s97, s97, s8
s_bfe_u32 s8, s5, 0x30001
s_lshr_b32 s6, s4, 2
s_and_b32 s7, s4, 3
s_lshl_b32 s7, s7, 3
s_add_u32 s7, s7, s8
s_and_b32 s8, s5, 1
s_lshl_b32 s5, s8, 2
s_xor_b32 s5, s5, s3
s_lshl_b32 s10, s6, 5
s_add_u32 s10, s10, s7
s_lshl_b32 s10, s10, 3
s_add_u32 s10, s10, s5
s_lshl_b32 s10, s10, 14
s_mul_i32 s9, s5, {16*CKS}
s_mov_b32 s14, s9
v_lshlrev_b32 v7, 4, v1
s_mov_b64 s[60:61], s[18:19]
s_mov_b32 s62, 0x800000
s_mov_b64 s[56:57], s[26:27]
s_mov_b32 s58, 0x400000
s_barrier""")
    def ckdma(cnt, pol):
        for n in range(cnt):
            I(f"s_mov_b32 m0, s14\ns_add_u32 s14, s14, {CKS}\nbuffer_load_dwordx4 v7, {SV}, s10 offen {pol} lds\ns_add_u32 s10, s10, 1024")
    I("s_cmp_lg_u32 s3, 0\ns_cbranch_scc1 L_B1")
    ckdma(4, nt2)
    I("s_waitcnt lgkmcnt(0)\ns_add_u32 s42, s42, 1\ns_and_b32 s43, s42, 0xff")
    L("L_A1")
    extra = 4
    I(f"""v_and_b32 v{T0}, 1, v1
v_lshlrev_b32 v{T0}, 4, v{T0}
v_mov_b32 v{T1}, 0x0c0c0100
v_mov_b32 v{T2}, 0x0c0c0302
v_alignbit_b32 v{T1}, v{T1}, v{T1}, v{T0}
v_alignbit_b32 v{T2}, v{T2}, v{T2}, v{T0}
v_bfe_u32 v{T0}, v1, 1, 2
v_mov_b32 v{T3}, 0x0c0c0c0c""")
    for r in range(4):
        I(f"v_cmp_eq_u32 vcc, {r}, v{T0}\nv_cndmask_b32 v{SEL+2*r}, v{T3}, v{T1}, vcc\nv_cndmask_b32 v{SEL+2*r+1}, v{T3}, v{T2}, vcc")
    I(f"v_lshlrev_b32 v4, 4, v1")
    I(f"s_mov_b32 s15, 0xffff0000\nv_mov_b32 v{T3}, 0x3f803f80\nv_mov_b32 v{T0}, 0")
    I(f"s_waitcnt vmcnt({18+extra})")
    TS(2)
    for i in range(8): I(f"v_dot2_f32_bf16 v{T0}, v{XS+i}, v{T3}, v{T0}")
    def unp(dst, src, i):
        I(f"v_lshlrev_b32 v{dst+2*i}, 16, v{src+i}\nv_and_b32 v{dst+2*i+1}, s15, v{src+i}")
    unp(F, XS, 0); unp(F, XS, 1)
    dpp("v_add_f32", T0, "quad_perm:[1,0,3,2]"); unp(F, XS, 2)
    dpp("v_add_f32", T0, "quad_perm:[2,3,0,1]"); unp(F, XS, 3)
    dpp("v_add_f32", T0, "row_half_mirror")
    I(f"v_mov_b32 v{T1}, v{T0}"); unp(F, XS, 4)
    I(f"v_permlane16_swap_b32 v{T0}, v{T1}\nv_add_f32 v{T0}, v{T0}, v{T1}\nv_mov_b32 v{T1}, v{T0}"); unp(F, XS, 5)
    I(f"v_permlane32_swap_b32 v{T0}, v{T1}\nv_add_f32 v{T0}, v{T0}, v{T1}")
    unp(F, XS, 6); unp(F, XS, 7)
    I(f"v_mul_f32 v{T0}, {f32(-1.0/512)}, v{T0}")
    I(f"v_mov_b32 v{T1}, v{T0}")
    for i in range(8): I(f"v_pk_add_f32 v[{F+2*i}:{F+2*i+1}], v[{F+2*i}:{F+2*i+1}], v[{T0}:{T1}]")
    I(f"v_pk_mul_f32 v[{T2}:{T3}], v[{F}:{F+1}], v[{F}:{F+1}]")
    for i in range(1, 8): I(f"v_pk_fma_f32 v[{T2}:{T3}], v[{F+2*i}:{F+2*i+1}], v[{F+2*i}:{F+2*i+1}], v[{T2}:{T3}]")
    I(f"v_add_f32 v{T2}, v{T2}, v{T3}")
    I(f"s_waitcnt vmcnt({16+extra})")
    unp(G, XC, 0)
    dpp("v_add_f32", T2, "quad_perm:[1,0,3,2]"); unp(G, XC, 1)
    dpp("v_add_f32", T2, "quad_perm:[2,3,0,1]"); unp(G, XC, 2)
    dpp("v_add_f32", T2, "row_half_mirror")
    I(f"v_mov_b32 v{T3}, v{T2}"); unp(G, XC, 3)
    I(f"v_permlane16_swap_b32 v{T2}, v{T3}\nv_add_f32 v{T2}, v{T2}, v{T3}\nv_mov_b32 v{T3}, v{T2}"); unp(G, XC, 4)
    I(f"v_permlane32_swap_b32 v{T2}, v{T3}\nv_add_f32 v{T2}, v{T2}, v{T3}")
    I(f"v_mul_f32 v{T2}, {f32(1.0/512)}, v{T2}")
    I(f"v_cvt_pk_bf16_f32 v{T3}, v{T0}, v{T2}")
    unp(G, XC, 5)
    I(f"v_lshlrev_b32 v{T0}, 16, v{T3}\nv_and_b32 v{T2}, s15, v{T3}")
    I(f"v_add_f32 v{T2}, {f32(1e-5)}, v{T2}\nv_cvt_pk_bf16_f32 v{T2}, v{T2}, v{T2}\nv_and_b32 v{T2}, s15, v{T2}\nv_sqrt_f32 v{T2}, v{T2}")
    unp(G, XC, 6)
    I(f"v_cvt_pk_bf16_f32 v{T2}, v{T2}, v{T2}\nv_and_b32 v{T2}, s15, v{T2}\nv_rcp_f32 v{T2}, v{T2}")
    unp(G, XC, 7)
    I(f"v_mov_b32 v{T1}, v{T0}\nv_mov_b32 v{T3}, v{T2}")
    for i in range(8):
        p = f"v[{G+2*i}:{G+2*i+1}]"
        I(f"v_pk_add_f32 {p}, {p}, v[{T0}:{T1}]")
        if o['ln_mimic']:
            I(f"v_cvt_pk_bf16_f32 v{XP+i}, v{G+2*i}, v{G+2*i+1}")
            unp(G, XP, i)
        I(f"v_pk_mul_f32 {p}, {p}, v[{T2}:{T3}]")
        I(f"v_cvt_pk_bf16_f32 v{XP+i}, v{G+2*i}, v{G+2*i+1}")
    TS(3)
    def aop(n, base):
        for r in range(4): I(f"v_perm_b32 v{base+4*(n%2)+r}, v{XP+n//2}, v{XP+n//2}, v{SEL+2*r+(n%2)}")
    aop(0, AOP)
    for n in range(16):
        if n < 15: aop(n + 1, AOP)
        I(f"s_waitcnt vmcnt({extra+15-n})")
        mfma(ACC, AOP + 4 * (n % 2), WR + 4 * n, n == 0)
    I(f"s_mov_b32 s15, 0xffffff00\nv_mov_b32 v{T0}, s43")
    I(f"s_add_u32 s12, s13, {O_H1:#x}\ns_add_u32 s13, s13, {O_H1B:#x}")
    for r in range(4): I(f"v_and_or_b32 v{ACC+r}, v{ACC+r}, s15, v{T0}")
    if o['h1fast']: I(f"buffer_store_dwordx4 {vr(ACC)}, v4, {WS}, s12 offen")
    I(f"buffer_store_dwordx4 {vr(ACC)}, v4, {WS}, s13 offen sc1")
    TS(4)
    I("s_barrier\ns_cmp_ge_u32 s2, 128\ns_cbranch_scc1 L_B0b")
    I(f"""s_bfe_u32 s97, s5, 0x10003
s_xor_b32 s97, s97, 1
s_lshl_b32 s97, s97, 3
s_add_u32 s97, s97, s4
s_mul_i32 s99, s96, {64*2752}
s_cmp_ge_u32 s97, 11
s_cselect_b64 s[52:53], s[32:33], s[30:31]
s_cselect_b32 s12, 11, 0
s_sub_u32 s12, s97, s12
s_lshl_b32 s12, s12, 8
s_add_u32 s98, s99, s12
s_add_u32 s12, s97, 5
s_lshl_b32 s12, s12, 8
s_add_u32 s99, s99, s12
s_mov_b32 s54, {GUSZ}""")
    I(f"s_waitcnt vmcnt({2 if o['h1fast'] else 1})\ns_branch L_Hb2")

    QO = 8
    def a2prep():
        I(f"""v_xor_b32 v6, v2, v3
v_lshlrev_b32 v6, 4, v6
v_lshl_add_u32 v6, v3, 8, v6
s_lshl_b32 s15, s3, 13
v_add_u32 v6, s15, v6""")
        for ks in range(4):
            I(f"ds_read_b128 {vr(UK+4*ks)}, v6")
            if ks < 3: I(f"v_xor_b32 v6, {64*(ks ^ (ks+1))}, v6")
        I(f"v_bfe_u32 v30, v3, 2, 1\nv_mul_u32_u24 v30, 320, v30\nv_lshl_add_u32 v30, v2, 4, v30\nv_add_u32 v30, {L_QB}, v30")
        I(f"v_lshlrev_b32 v31, 16, v2\nv_lshl_add_u32 v31, v3, 2, v31\ns_lshl_b32 s14, s6, 11\ns_lshl_b32 s15, s7, 9\ns_add_u32 s14, s14, s15\ns_lshl_b32 s15, s3, 6\ns_add_u32 s14, s14, s15\ns_add_u32 s14, s14, {O_H2:#x}")
        I("s_and_b32 s15, s42, 0xffff\nv_mov_b32 v29, s15")
        I(f"v_mul_u32_u24 v166, {16*2752}, v2\nv_lshl_add_u32 v166, v3, 4, v166")
    L("L_Hpoll1")
    I(f"""v_subrev_u32 v5, 256, v0
v_lshlrev_b32 v4, 2, v5
s_lshl_b32 s10, s6, 13
s_add_u32 s10, s10, {O_H1 if o['h1fast'] else O_H1B:#x}
s_add_u32 s11, s10, 4096
v_lshrrev_b32 v6, 7, v5
v_mul_u32_u24 v6, 320, v6
v_bfe_u32 v12, v5, 2, 4
v_lshl_add_u32 v6, v12, 4, v6
v_bfe_u32 v12, v5, 6, 1
v_lshl_add_u32 v6, v12, 3, v6
v_and_b32 v5, 3, v5
v_lshl_add_u32 v5, v5, 1, v6
v_add_u32 v5, {L_QB}, v5
s_mov_b32 s12, 0
s_mov_b32 s13, 0xffffff00
s_barrier""")
    def h1loads():
        for p in range(8):
            I(f"buffer_load_dword v{12+p}, v4, {WS}, s{10+p//4} offen offset:{1024*(p%4)} sc1")
    I("s_waitcnt vmcnt(0)")
    TS(3)
    h1loads()
    a2prep()
    L("L_Hpoll1l")
    I("s_add_u32 s12, s12, 1")
    if o['h1fast']:
        I(f"s_cmp_eq_u32 s12, {o['fastn']}\ns_cselect_b32 s15, {O_H1B-O_H1:#x}, 0\ns_add_u32 s10, s10, s15\ns_add_u32 s11, s11, s15")
    I("s_waitcnt vmcnt(0)")
    tagcheck(20, range(12, 20), "s43")
    I(f"v_and_b32 v20, 0xff, v20\nv_cmp_ne_u32 vcc, 0, v20\ns_cbranch_vccz L_Hpoll1d\ns_cmp_gt_u32 s12, {SPIN}\ns_cbranch_scc1 L_Hpoll1d")
    h1loads()
    I("s_branch L_Hpoll1l")
    L("L_Hpoll1d")
    TS(5)
    if prof: I("s_mov_b32 s88, s12")
    if o['strip']:
        for p in range(8): I(f"v_and_b32 v{12+p}, s13, v{12+p}")
    I("v_add_f32 v12, v12, v13\nv_add_f32 v14, v14, v15\nv_add_f32 v16, v16, v17\nv_add_f32 v18, v18, v19\nv_add_f32 v12, v12, v14\nv_add_f32 v16, v16, v18\nv_add_f32 v12, v12, v16")
    I("v_cvt_pk_bf16_f32 v12, v12, v12\nds_write_b16 v5, v12")
    I("s_branch L_Hb3")
    L("L_Hb2")
    a2prep()
    L("L_Hb3")
    I("s_waitcnt lgkmcnt(0)\ns_barrier")
    for ks in range(4): I(f"ds_read_b128 {vr(QO+4*ks)}, v30 offset:{64*ks}")
    I("s_mov_b32 s11, 0xffff0000")
    for ks in range(4):
        I(f"s_waitcnt lgkmcnt({3-ks})")
        mfma(24, QO + 4 * ks, UK + 4 * ks, ks == 0)
    exec_set(0xffffffff, 0)
    I("v_cvt_pk_bf16_f32 v28, v24, v24\nv_and_or_b32 v28, v28, s11, v29")
    I(f"buffer_store_dword v28, v31, {WS}, s14 offen sc1")
    exec_all()
    TS(6)
    GW, GW2, GA, GC = 32, 168, 104, 112
    if o['hdelay']: I(f"s_sleep {o['hdelay']}")
    if o['glu']:
        I("s_cmp_lg_u32 s3, 0\ns_cbranch_scc1 L_Hng")
        if o['gate']:
            I(f"""v_mov_b32 v4, 0
s_lshl_b32 s10, s2, 7
s_add_u32 s10, s10, {O_FL:#x}
s_mov_b32 s11, 0
L_Hgate:
buffer_load_dword v5, v4, {WS}, s10 offen sc1
s_add_u32 s11, s11, 1
s_waitcnt vmcnt(0)
v_cmp_ne_u32 vcc, s42, v5
s_cmp_ge_u32 s11, {o['gate']}
s_cbranch_scc1 L_Hgated
s_cbranch_vccnz L_Hgate
L_Hgated:""")
            TS(4)
        for n in range(16):
            I(f"buffer_load_dwordx4 {vr(GW+4*n)}, v166, {SW}, s98 offen {nt1}")
            if n < 15: I("s_add_u32 s98, s98, 2752")
        I("s_cmp_ge_u32 s97, 6\ns_cbranch_scc1 L_Hng\ns_mov_b64 s[52:53], s[32:33]")
        for n in range(16):
            I(f"buffer_load_dwordx4 {vr(GW2+4*n)}, v166, {SW}, s99 offen {nt1}")
            if n < 15: I("s_add_u32 s99, s99, 2752")
        L("L_Hng")
    I("s_barrier")
    I("s_cmp_eq_u32 s3, 0\ns_cbranch_scc1 L_Hg0\ns_cmp_ge_u32 s3, 4\ns_cbranch_scc1 L_Huv")
    if o['wopf']:
        I(f"""s_cmp_eq_u32 s3, 3
s_cselect_b64 s[52:53], s[34:35], s[26:27]
s_cselect_b32 s54, {GUSZ}, s54
s_cselect_b32 s11, 0, 1
s_cselect_b32 s13, s29, s6""")
        if o['bwo']: I("s_cbranch_scc0 L_Hnw")
        if not o['dnpf']: I("s_cbranch_scc1 L_Hnw")
        I(f"""s_lshl_b32 s10, s13, 2
s_add_u32 s10, s10, s7
s_lshl_b32 s10, s10, s11
s_sub_u32 s12, s3, 1
s_mul_i32 s12, s12, s11
s_add_u32 s10, s10, s12
s_lshl_b32 s10, s10, 14
v_lshlrev_b32 v4, 6, v1""")
        for n in range(4):
            I(f"buffer_load_dword v{232+n}, v4, {SW}, s10 offen\ns_add_u32 s10, s10, 0x1000")
        L("L_Hnw")
        I(f"""s_lshl_b32 s10, s6, 2
s_add_u32 s10, s10, s7
s_lshl_b32 s10, s10, 10
s_add_u32 s10, s10, {O_H4:#x}
v_lshlrev_b32 v4, 4, v1
s_cmp_lg_u32 s3, 3
s_cbranch_scc1 L_Hnp
buffer_load_dword v238, v4, {WS}, s10 offen sc1
L_Hnp:""")
    I("s_barrier\ns_branch L_Hg2")
    L("L_Huv")
    I(f"""v_and_b32 v4, 1, v2
v_lshlrev_b32 v4, 1, v4
v_xor_b32 v4, v4, v3
s_and_b32 s10, s3, 1
s_lshl_b32 s10, s10, 3
v_xor_b32 v4, s10, v4
v_lshlrev_b32 v5, 13, v2
v_lshl_add_u32 v4, v4, 4, v5
s_and_b32 s12, s3, 3
s_lshl_b32 s10, s7, 2
s_add_u32 s10, s10, s12
s_lshl_b32 s10, s10, 18
s_lshl_b32 s11, s6, 8
s_add_u32 s10, s10, s11
s_lshl_b32 s11, s12, 13
s_add_u32 s11, s11, {L_UV}
s_barrier""")
    for n in range(8):
        I(f"s_mov_b32 m0, s11\ns_add_u32 s11, s11, 1024\nbuffer_load_dwordx4 v4, {SV}, s10 offen {nt1} lds\ns_add_u32 s10, s10, 0x8000")
        if n == 3: I("v_xor_b32 v4, 64, v4")
    I("s_branch L_Hg2")
    L("L_Hg0")
    I("s_barrier")
    if o['glu']:
        I(f"s_lshl_b32 s12, s97, 3\ns_add_u32 s12, s12, s96\ns_lshl_b32 s12, s12, 10\ns_add_u32 s12, s12, {O_HG:#x}\ns_add_u32 s13, s12, {16*8*1024}\ns_mov_b32 s15, 0xffffff00\nv_mov_b32 v16, s43\nv_lshlrev_b32 v5, 4, v1")
        aop(0, GA)
        I("s_waitcnt vmcnt(0)")
        for n in range(16):
            if n < 15: aop(n + 1, GA)
            mfma(GC, GA + 4 * (n % 2), GW + 4 * n, n == 0)
            mfma(GC + 4, GA + 4 * (n % 2), GW2 + 4 * n, n == 0)
        for r in range(8): I(f"v_and_or_b32 v{GC+r}, v{GC+r}, s15, v16")
        I(f"buffer_store_dwordx4 {vr(GC)}, v5, {WS}, s12 offen sc1")
        I(f"s_cmp_ge_u32 s97, 6\ns_cbranch_scc1 L_Hg1\nbuffer_store_dwordx4 {vr(GC+4)}, v5, {WS}, s13 offen sc1")
        L("L_Hg1")
        TS(2)
    L("L_Hg2")
    UVO, PL, CA, CO = 32, 48, 56, 64
    I(f"""v_bfe_u32 v4, v1, 2, 2
v_and_b32 v6, 3, v1
v_and_b32 v5, 1, v2
v_lshl_add_u32 v5, v4, 1, v5
v_xor_b32 v30, s3, v5
v_lshlrev_b32 v30, 5, v30
v_lshl_add_u32 v30, v4, 12, v30
v_lshl_add_u32 v30, v2, 8, v30
v_lshl_add_u32 v30, v6, 3, v30
v_add_u32 v30, {L_UV}, v30
v_lshlrev_b32 v4, 9, v2
v_lshl_add_u32 v4, v3, 4, v4
s_lshl_b32 s14, s6, 2
s_add_u32 s14, s14, s7
s_lshl_b32 s10, s14, 14
s_and_b32 s12, s3, 1
s_lshr_b32 s13, s3, 1
s_lshl_b32 s15, s12, 2
s_add_u32 s15, s15, s13
s_lshl_b32 s11, s15, 11
s_add_u32 s10, s10, s11
s_add_u32 s10, s10, {O_H3:#x}
s_lshl_b32 s11, s15, 5
s_add_u32 s11, s11, {L_CF}
v_lshl_add_u32 v5, v2, 3, s11
s_lshl_b32 s11, s12, 2
s_add_u32 s11, s11, {L_CF+256}
v_mov_b32 v6, s11
s_mul_i32 s11, s15, 288
s_add_u32 s11, s11, {L_CC}
v_lshlrev_b32 v7, 4, v3
v_lshl_add_u32 v7, v2, 3, v7
v_add_u32 v7, s11, v7
v_and_b32 v12, 1, v3
v_lshlrev_b32 v12, 4, v12
v_mov_b32 v13, 0xffff
v_lshlrev_b32 v12, v12, v13
v_lshrrev_b32 v13, 1, v3""")
    for r in range(4):
        I(f"v_cmp_eq_u32 vcc, {r}, v13\nv_cndmask_b32 v{8+r}, 0, v12, vcc")
    I(f"""v_and_b32 v12, 7, v3
v_mul_u32_u24 v12, 288, v12
v_lshl_add_u32 v12, v2, 4, v12
v_add_u32 v12, {L_CC}, v12
v_lshlrev_b32 v15, 9, v2
v_lshl_add_u32 v15, v3, 2, v15
s_lshl_b32 s11, s14, 10
s_lshl_b32 s13, s3, 6
s_add_u32 s11, s11, s13
s_add_u32 s11, s11, {O_H4:#x}
s_add_u32 s12, s11, {D_SLOW:#x}
v_lshlrev_b32 v16, 9, v1
s_lshr_b32 s13, s6, 4
s_lshl_b32 s13, s13, 8
s_and_b32 s15, s6, 15
s_lshl_b32 s15, s15, 4
s_add_u32 s13, s13, s15
s_add_u32 s13, s13, {O_ST:#x}
v_mov_b32 v31, s43
s_mov_b32 s14, 0xffffff00
s_mov_b32 s15, 0""")
    I("s_waitcnt vmcnt(0)")
    TS(7)
    I("s_barrier")
    for ks in range(4):
        for t in range(2):
            I(f"ds_read_b64_tr_b16 v[{UVO+4*ks+2*t}:{UVO+4*ks+2*t+1}], v30 offset:{(64*(ks//2)+8*t+4*(ks%2))*256}")
    I("s_cmp_eq_u32 s3, 0\ns_cbranch_scc0 L_Hb4b")
    L("L_HpollS")
    I(f"""buffer_load_dwordx4 v[20:23], v16, {WS}, s13 offen sc1
s_add_u32 s15, s15, 1
s_waitcnt vmcnt(0)
v_xor_b32 v17, s42, v21
v_bitop3_b32 v17, v17, v23, s42 bitop3:0xf6
v_cmp_ne_u32 vcc, 0, v17
s_cmp_gt_u32 s15, {SPIN}
s_cbranch_scc1 L_HpollSd
s_cbranch_vccnz L_HpollS""")
    L("L_HpollSd")
    TS(8)
    L("L_Hb4b")
    I("s_barrier")
    TS(9)
    def payload():
        for n in range(2): I(f"buffer_load_dwordx4 {vr(PL+4*n)}, v4, {WS}, s10 offen offset:{256*n} sc1")
    payload()
    I("s_cmp_eq_u32 s3, 0\ns_cbranch_scc0 L_Hb5")
    I("v_mov_b32 v17, v20")
    for ctl in ("quad_perm:[1,0,3,2]", "quad_perm:[2,3,0,1]", "row_half_mirror", "row_mirror"): dpp("v_max_f32", 17, ctl)
    swap_red("v_max_f32", 17, 18, 16)
    I("v_sub_f32 v17, v20, v17\nv_exp_f32 v17, v17\nv_cvt_pk_bf16_f32 v17, v17, v17\nv_and_b32 v18, 0xffff0000, v17\nv_mul_f32 v18, v18, v22")
    I(f"v_lshlrev_b32 v19, 2, v1\nv_add_u32 v19, {L_CF}, v19\nds_write_b32 v19, v17")
    for ctl in ("quad_perm:[1,0,3,2]", "quad_perm:[2,3,0,1]", "row_half_mirror", "row_mirror"): dpp("v_add_f32", 18, ctl)
    swap_red("v_add_f32", 18, 17, 16)
    I(f"v_rcp_f32 v18, v18\nv_lshrrev_b32 v19, 5, v1\nv_lshlrev_b32 v19, 2, v19\nv_add_u32 v19, {L_CF+256}, v19\nds_write_b32 v19, v18\ns_waitcnt lgkmcnt(0)")
    L("L_Hb5")
    I("s_barrier")
    I("ds_read_b64 v[16:17], v5\nds_read_b32 v20, v6\ns_waitcnt lgkmcnt(0)")
    for n in range(2):
        for r in range(4): I(f"v_and_b32 v{CA+4*n+r}, v{16+n}, v{8+r}")
    I("s_mov_b32 s15, 0")
    L("L_HpollP")
    I("s_waitcnt vmcnt(0)")
    I(f"v_max3_u32 v21, v{PL}, v{PL+1}, v{PL+2}\nv_max3_u32 v21, v21, v{PL+3}, v{PL+4}\nv_max3_u32 v21, v21, v{PL+5}, v{PL+6}")
    I(f"v_max_u32 v21, v21, v{PL+7}\nv_cmp_eq_u32 vcc, -1, v21\ns_cbranch_vccz L_HpollPd\ns_add_u32 s15, s15, 1\ns_cmp_gt_u32 s15, {SPIN}\ns_cbranch_scc1 L_HpollPd")
    payload()
    I("s_branch L_HpollP")
    L("L_HpollPd")
    TS(10)
    if prof: I("s_add_u32 s90, s15, 1")
    for n in range(2): mfma(24, CA + 4 * n, PL + 4 * n, n == 0)
    exec_set(0xffffffff, 0)
    I("v_mul_f32 v24, v24, v20\nv_mul_f32 v25, v25, v20\nv_mul_f32 v26, v26, v20\nv_mul_f32 v27, v27, v20\nv_cvt_pk_bf16_f32 v24, v24, v25\nv_cvt_pk_bf16_f32 v25, v26, v27\nds_write_b64 v7, v[24:25]")
    exec_all()
    I("s_waitcnt lgkmcnt(0)\ns_barrier")
    for ks in range(4): I(f"ds_read_b128 {vr(CO+4*ks)}, v12 offset:{64*ks}")
    for ks in range(4):
        I(f"s_waitcnt lgkmcnt({3-ks})")
        mfma(80, CO + 4 * ks, UVO + 4 * ks, ks == 0)
    exec_set(0xffffffff, 0)
    I("v_add_f32 v80, v80, v81\nv_add_f32 v82, v82, v83\nv_add_f32 v80, v80, v82\nv_and_or_b32 v80, v80, s14, v31")
    if o['h1fast']: I(f"buffer_store_dword v80, v15, {WS}, s11 offen")
    I(f"buffer_store_dword v80, v15, {WS}, s12 offen sc1")
    exec_all()
    TS(11)
    I("s_cmp_lg_u32 s3, 0\ns_cbranch_scc1 L_fin\ns_cmp_ge_u32 s2, 32\ns_cbranch_scc1 L_fin")
    I(f"""s_mov_b64 s[56:57], s[36:37]
s_mov_b32 s58, 2048
s_lshl_b32 s10, s2, 12
s_add_u32 s10, s10, {O_H5:#x}
s_lshl_b32 s11, s2, 6
v_lshlrev_b32 v4, 4, v1
v_and_b32 v5, 7, v1
v_lshlrev_b32 v5, 3, v5
buffer_load_dwordx2 v[6:7], v5, {SX}, s11 offen
s_mov_b32 s12, 0""")
    def pk(a, b): I(f"v_pk_add_f32 v[{a}:{a+1}], v[{a}:{a+1}], v[{b}:{b+1}]")
    L("L_Dpoll")
    for n in range(4): I(f"buffer_load_dwordx4 {vr(32+4*n)}, v4, {WS}, s10 offen offset:{1024*n} sc1")
    I("s_add_u32 s12, s12, 1")
    for n in range(4):
        I(f"s_waitcnt vmcnt({3-n})")
        tagcheck(8, range(32 + 4 * n, 36 + 4 * n), "s43", n == 0)
    I(f"v_and_b32 v8, 0xff, v8\nv_cmp_ne_u32 vcc, 0, v8\ns_cmp_gt_u32 s12, {SPIN}\ns_cbranch_scc1 L_Dpolld\ns_cbranch_vccnz L_Dpoll")
    L("L_Dpolld")
    TS(5)
    if o['strip']:
        for p in range(32, 48): I(f"v_and_b32 v{p}, s14, v{p}")
    for h in (0, 2): pk(32 + h, 36 + h); pk(40 + h, 44 + h)
    for h in (0, 2): pk(32 + h, 40 + h)
    for r in range(4): dpp("v_add_f32", 32 + r, "row_ror:8")
    for which in (16, 32):
        for r in range(4): I(f"v_mov_b32 v{36+r}, v{32+r}")
        for r in range(4): I(f"v_permlane{which}_swap_b32 v{32+r}, v{36+r}")
        for r in range(4): I(f"v_add_f32 v{32+r}, v{32+r}, v{36+r}")
    I("v_lshlrev_b32 v36, 16, v6\nv_and_b32 v37, 0xffff0000, v6\nv_lshlrev_b32 v38, 16, v7\nv_and_b32 v39, 0xffff0000, v7")
    for r in range(4): I(f"v_add_f32 v{32+r}, v{32+r}, v{36+r}")
    I("v_cvt_pk_bf16_f32 v32, v32, v33\nv_cvt_pk_bf16_f32 v33, v34, v35")
    exec_set(0xff, 0)
    I(f"buffer_store_dwordx2 v[32:33], v5, {SK}, s11 offen")
    I("s_cmp_lg_u32 s2, 0\ns_cbranch_scc1 L_Dend")
    exec_set(1, 0)
    I(f"v_mov_b32 v8, s42\nv_mov_b32 v9, 0\nbuffer_store_dword v8, v9, {WS}, 0 offen offset:{O_EP} sc1")
    if o['hold']:
        if o['henc'] >= 0:
            I(f"s_waitcnt lgkmcnt(0)\ns_sub_u32 s94, s{64+2*o['henc']}, s92\ns_lshl_b32 s94, s94, 2\ns_add_u32 s92, s92, s94")
        I(f"s_add_u32 s92, s92, {o['hold']}\nL_hold:\ns_memrealtime s[94:95]\ns_waitcnt lgkmcnt(0)\ns_sub_u32 s94, s94, s92\ns_cmp_lt_i32 s94, 0\ns_cbranch_scc1 L_hold")
    L("L_Dend")
    exec_all()
    TS(1)
    I("s_branch L_fin")

    KO, VO, QR, QO2 = 32, 96, 176, 176
    def h2loads():
        I("s_mov_b32 s13, s12")
        for n in range(8):
            I(f"buffer_load_dwordx4 {vr(QR+4*n)}, v5, {WS}, s13 offen sc1")
            if n < 7: I("s_add_u32 s13, s13, 4096")
    def prepB():
        I(f"""v_lshlrev_b32 v4, 4, v1
v_and_b32 v10, 255, v0
v_lshlrev_b32 v5, 4, v10
s_lshl_b32 s12, s6, 1
s_add_u32 s12, s12, s8
s_lshl_b32 s12, s12, 15
s_add_u32 s12, s12, {O_H2:#x}
v_mul_u32_u24 v25, {CKS}, v3
v_lshl_add_u32 v25, v2, 4, v25
v_add_u32 v6, s9, v25
s_xor_b32 s11, s5, 4
s_mul_i32 s11, s11, {16*CKS}
v_add_u32 v24, s11, v25
v_add_u32 v25, {L_QL}, v25
v_lshrrev_b32 v8, 2, v1
v_mul_u32_u24 v8, {CKS}, v8
v_and_b32 v9, 3, v1
v_lshl_add_u32 v8, v9, 3, v8
s_lshl_b32 s9, s5, 7
v_add_u32 v8, s9, v8
s_mul_i32 s9, s8, {64*CKS}
s_sub_u32 s11, {64*CKS}, s9
v_add_u32 v9, s11, v8
v_add_u32 v8, s9, v8
v_bfe_u32 v10, v0, 7, 1
v_mul_u32_u24 v10, {CKS}, v10
v_and_b32 v11, 127, v0
v_lshl_add_u32 v10, v11, 3, v10
v_add_u32 v10, {L_QL}, v10
v_lshlrev_b32 v28, 4, v3
v_add_u32 v28, {L_MX}, v28
s_lshl_b32 s9, s3, 2
v_add_u32 v11, s9, v28
v_add_u32 v30, {L_PB}, v4
s_lshl_b32 s9, s3, 10
v_add_u32 v29, s9, v30
v_lshrrev_b32 v31, 3, v3
v_lshl_add_u32 v31, v2, 2, v31
v_lshlrev_b32 v31, 16, v31
v_and_b32 v16, 7, v3
v_lshl_add_u32 v31, v16, 4, v31
s_lshl_b32 s98, s8, 20
s_lshr_b32 s9, s5, 1
s_lshl_b32 s9, s9, 14
s_add_u32 s98, s98, s9
s_lshl_b32 s9, s6, 13
s_add_u32 s98, s98, s9
s_lshl_b32 s9, s7, 8
s_add_u32 s98, s98, s9
s_and_b32 s9, s5, 1
s_lshl_b32 s9, s9, 7
s_add_u32 s98, s98, s9
s_add_u32 s98, s98, {O_H3:#x}
s_add_u32 s99, s98, 0x20000
s_lshl_b32 s11, s6, 5
s_add_u32 s11, s11, s7
s_lshl_b32 s11, s11, 1
s_add_u32 s11, s11, s8
s_lshl_b32 s11, s11, 8
s_add_u32 s11, s11, {O_ST:#x}
v_lshlrev_b32 v26, 1, v2
v_xor_b32 v26, v26, v3
v_lshlrev_b32 v26, 4, v26
v_lshl_add_u32 v26, v2, 10, v26
v_xor_b32 v27, 0x80, v26
s_mov_b64 s[52:53], s[34:35]
s_mov_b32 s54, {GUSZ}
v_mov_b32 v12, -1
v_mov_b32 v13, -1
v_mov_b32 v14, -1
v_mov_b32 v15, -1
v_mov_b32 v17, 0x07060302
v_mov_b32 v240, 0""")
    def clean():
        I(f"buffer_store_dwordx4 v[12:15], v31, {WS}, s98 offen sc1\nbuffer_store_dwordx4 v[12:15], v31, {WS}, s99 offen sc1")
    def kreads(areg):
        for ks in range(16): I(f"ds_read_b128 {vr(KO+4*ks)}, v{areg} offset:{64*ks}")
    def vreads(t, kss):
        for ks in kss:
            for tau in range(4):
                oo = VO + 16 * tau + 4 * ks + 2 * t
                I(f"ds_read_b64_tr_b16 v[{oo}:{oo+1}], v{8+t} offset:{16*ks*CKS+32*tau}")
    HGR = 208
    def gluprep():
        I(f"""s_and_b32 s9, s3, 1
s_lshl_b32 s15, s29, 1
s_add_u32 s15, s15, s9
s_cmp_lt_u32 s3, 6
s_cbranch_scc1 L_Bp1
s_lshl_b32 s20, s9, 13
s_add_u32 s20, s20, {L_QL}
s_lshl_b32 s21, s15, 15
s_lshl_b32 s9, s101, 8
s_add_u32 s21, s21, s9
s_branch L_Bp2
L_Bp1:
s_lshr_b32 s20, s15, 2
s_lshl_b32 s20, s20, 13
s_and_b32 s21, s15, 3
s_lshl_b32 s21, s21, 6
s_add_u32 s20, s20, s21
s_add_u32 s20, s20, {O_HG:#x}
s_add_u32 s21, s20, 4096
s_add_u32 s22, s20, {88*1024}
s_add_u32 s23, s22, 4096
L_Bp2:
v_lshlrev_b32 v240, 8, v2
v_lshl_add_u32 v240, v3, 2, v240
v_bfe_u32 v241, v1, 2, 1
v_lshlrev_b32 v241, 4, v241
v_bfe_u32 v242, v1, 4, 1
v_lshl_add_u32 v241, v242, 3, v241
v_bfe_u32 v242, v1, 3, 1
v_lshl_add_u32 v241, v242, 2, v241
v_and_b32 v242, 3, v1
v_add_u32 v241, v241, v242
v_lshlrev_b32 v241, 1, v241
v_lshrrev_b32 v242, 5, v1
v_mul_u32_u24 v242, 192, v242
v_add_u32 v241, v241, v242
s_and_b32 s9, s3, 1
s_lshl_b32 s9, s9, 6
s_add_u32 s9, s9, {L_HB}
v_add_u32 v241, s9, v241""")
    def hgloads():
        for p in range(16):
            I(f"buffer_load_dword v{HGR+p}, v240, {WS}, s{20+p//4} offen offset:{1024*(p%4)} sc1")
    L("L_B0b")
    ckdma(12, nt2)
    I("s_barrier")
    prepB()
    if o['cleanpos'] == 0: clean()
    I("s_branch L_B2")
    L("L_B1")
    if o['ukpf']:
        I(f"""s_cmp_lt_u32 s3, 4
s_cbranch_scc1 L_Bnuk
s_mov_b64 s[52:53], s[22:23]
s_lshl_b32 s11, s3, 17
s_add_u32 s11, s11, s97
v_lshrrev_b32 v8, 2, v1
v_lshlrev_b32 v8, 13, v8
v_and_b32 v9, 3, v1
v_lshl_add_u32 v8, v9, 6, v8
buffer_load_dword v236, v8, {SW}, s11 offen
L_Bnuk:""")
    I("s_waitcnt lgkmcnt(0)\ns_add_u32 s42, s42, 1\ns_and_b32 s43, s42, 0xff")
    if o['nearly'] == 0 or True:
        prepB()
        if o['cleanpos'] == 0: clean()
    I("s_cmp_ge_u32 s3, 4\ns_cbranch_scc1 L_B1w")
    I(f"s_cmp_le_u32 s3, {o['nearly']}\ns_cbranch_scc1 L_B1b\ns_barrier")
    L("L_B1b")
    ckdma(16, nt2)
    I(f"s_cmp_le_u32 s3, {o['nearly']}\ns_cbranch_scc0 L_B1c\ns_barrier")
    L("L_B1c")
    I("s_barrier")
    if o['gate']:
        I(f"s_cmp_lg_u32 s3, 1\ns_cbranch_scc1 L_B2\ns_sub_u32 s9, s2, 128\ns_lshl_b32 s9, s9, 7\ns_add_u32 s9, s9, {O_FL:#x}\nv_mov_b32 v16, s42\nv_mov_b32 v18, 0")
        exec_set(1, 0)
        I(f"buffer_store_dword v16, v18, {WS}, s9 offen")
        exec_all()
    L("L_B2")
    I("s_barrier")
    h2loads()
    I("s_waitcnt vmcnt(8)")
    TS(11)
    kreads(6)
    I("s_mov_b32 s9, 0")
    L("L_Bpoll")
    for n in range(8):
        I(f"s_waitcnt vmcnt({7-n})")
        tagcheck(16, range(QR + 4 * n, QR + 4 * n + 4), "s42", n == 0)
    I(f"v_and_b32 v16, 0xffff, v16\nv_cmp_ne_u32 vcc, 0, v16\ns_cbranch_vccz L_Bpolld\ns_add_u32 s9, s9, 1\ns_cmp_gt_u32 s9, {SPIN}\ns_cbranch_scc1 L_Bpolld")
    h2loads()
    I("s_branch L_Bpoll")
    L("L_Bpolld")
    TS(5)
    if prof: I("s_add_u32 s88, s9, 1")
    for n in range(8):
        I(f"v_perm_b32 v{QR+4*n}, v{QR+4*n+1}, v{QR+4*n}, v17\nv_perm_b32 v{QR+4*n+1}, v{QR+4*n+3}, v{QR+4*n+2}, v17")
        I(f"ds_write_b64 v10, v[{QR+4*n}:{QR+4*n+1}] offset:{2*CKS*n}")
    I("s_waitcnt lgkmcnt(0)\ns_barrier")
    TS(10)
    if o['prio']: I("s_setprio 3")
    for ks in range(8): I(f"ds_read_b128 {vr(QO2+4*ks)}, v25 offset:{64*ks}")
    seq = []
    for ks in range(16):
        I(f"s_waitcnt lgkmcnt(7)")
        mfma(16, KO + 4 * ks, QO2 + 4 * ks, ks == 0)
        if ks < 8: I(f"ds_read_b128 {vr(QO2+4*(ks+8))}, v25 offset:{64*(ks+8)}")
        else: I(f"ds_read_b128 {vr(VO+4*(ks-8))}, v24 offset:{64*(ks-8)}")
    for ks in range(16):
        I(f"s_waitcnt lgkmcnt({7 if ks < 9 else 15-ks})")
        mfma(20, VO + 4 * ks, QO2 + 4 * ks, ks == 0)
        if ks < 8: I(f"ds_read_b128 {vr(VO+4*(ks+8))}, v24 offset:{64*(ks+8)}")
    kappa = (128 ** -0.5) * math.log2(math.e)
    I(f"s_mov_b32 s9, {f32(kappa)}")
    I("v_max3_f32 v12, v16, v17, v18\nv_max3_f32 v12, v12, v19, v20\nv_max3_f32 v12, v12, v21, v22\nv_max_f32 v12, v12, v23")
    swap_red("v_max_f32", 12, 13, 16)
    swap_red("v_max_f32", 12, 13, 32)
    TS(3)
    I("ds_write_b32 v11, v12\ns_waitcnt lgkmcnt(0)\ns_barrier")
    I("ds_read_b128 v[12:15], v28")
    vreads(0, (0, 1))
    I("s_waitcnt lgkmcnt(8)\nv_max3_f32 v12, v12, v13, v14\nv_max_f32 v12, v12, v15\nv_mul_f32 v12, s9, v12")
    for r in range(8): I(f"v_fma_f32 v{16+r}, v{16+r}, s9, -v12")
    for r in range(8): I(f"v_exp_f32 v{16+r}, v{16+r}")
    for r in range(4): I(f"v_cvt_pk_bf16_f32 v{16+r}, v{16+2*r}, v{17+2*r}")
    I("ds_write_b128 v29, v[16:19]")
    vreads(1, (0, 1))
    TS(4)
    I("s_waitcnt lgkmcnt(8)\ns_barrier\ns_branch L_B8")
    L("L_B1w")
    if o['glu']: gluprep()
    I("s_barrier\ns_barrier\ns_cmp_lt_u32 s3, 6\ns_cbranch_scc1 L_B1x\ns_barrier")
    L("L_B1x")
    ckdma(16, nt3)
    I("s_cmp_lt_u32 s3, 6\ns_cbranch_scc0 L_B1y\ns_barrier")
    L("L_B1y")
    I("s_waitcnt vmcnt(0)")
    TS(11)
    I("s_barrier")
    if o['cleanpos'] == 1:
        clean()
        I(f"s_xor_b32 s18, s98, 0x8000\ns_xor_b32 s19, s99, 0x8000\nbuffer_store_dwordx4 v[12:15], v31, {WS}, s18 offen sc1\nbuffer_store_dwordx4 v[12:15], v31, {WS}, s19 offen sc1")
    if o['bwo']:
        I(f"""s_lshl_b32 s18, s100, 2
s_add_u32 s18, s18, s101
s_lshl_b32 s18, s18, 2
s_add_u32 s18, s18, s3
s_sub_u32 s18, s18, 4
s_lshl_b32 s18, s18, 13
s_add_u32 s19, s18, 4096
v_lshlrev_b32 v16, 6, v1
buffer_load_dword v232, v16, {SK}, s18 offen
buffer_load_dword v233, v16, {SK}, s19 offen""")
    vreads(0, range(4))
    I("s_barrier")
    I("ds_read_b128 v[12:15], v28")
    vreads(1, range(4))
    I(f"s_waitcnt vmcnt({2 if o['bwo'] else 0})")
    I(f"s_mov_b32 s9, {f32(kappa)}\ns_waitcnt lgkmcnt(0)\nv_max3_f32 v12, v12, v13, v14\nv_max_f32 v12, v12, v15\nv_mul_f32 v20, s9, v12")
    I("s_barrier")
    L("L_B8")
    TS(6)
    PO, OC = 160, 176
    for ks in range(4): I(f"ds_read_b128 {vr(PO+4*ks)}, v30 offset:{1024*ks}")
    I("s_cmp_ge_u32 s3, 4\ns_cbranch_scc1 L_B9")
    I("s_waitcnt lgkmcnt(4)")
    vreads(0, (2, 3))
    I("s_waitcnt lgkmcnt(8)")
    for tau in range(4): mfma(OC + 4 * tau, PO, VO + 16 * tau, True)
    vreads(1, (2,))
    for tau in range(4): mfma(OC + 4 * tau, PO + 4, VO + 16 * tau + 4, False)
    vreads(1, (3,))
    I("s_branch L_B10")
    L("L_B9")
    I("s_cmp_eq_u32 s3, 4\ns_cbranch_scc0 L_Bpv")
    for r in range(4): I(f"v_mov_b32 v{12+r}, 0x3f803f80")
    I("v_mov_b32 v21, s42\nv_mov_b32 v23, s42\ns_waitcnt lgkmcnt(0)")
    for ks in range(4): mfma(16, 12, PO + 4 * ks, ks == 0)
    exec_set(0xffff, 0)
    I(f"v_mov_b32 v22, v16\nbuffer_store_dwordx4 v[20:23], v4, {WS}, s11 offen sc1")
    exec_all()
    L("L_Bpv")
    for ks in range(2):
        I(f"s_waitcnt lgkmcnt({3-ks})")
        for tau in range(4): mfma(OC + 4 * tau, PO + 4 * ks, VO + 16 * tau + 4 * ks, ks == 0)
    I("s_waitcnt lgkmcnt(0)")
    L("L_B10")
    I("v_mov_b32 v24, -2")
    for ks in range(2, 4):
        I(f"s_waitcnt lgkmcnt({4 if ks == 2 else 0})")
        for tau in range(4): mfma(OC + 4 * tau, PO + 4 * ks, VO + 16 * tau + 4 * ks, False)
    for rho in range(2):
        T = 192 + 8 * rho; O = T + 4
        for e in range(2):
            r = 2 * rho + e
            I(f"v_cvt_pk_bf16_f32 v{T+2*e}, v{OC+r}, v{OC+4+r}\nv_cvt_pk_bf16_f32 v{T+2*e+1}, v{OC+8+r}, v{OC+12+r}")
        for i in range(4): I(f"v_min_u32 v{O+i}, v{T+i}, v24")
        for i in range(2):
            I(f"v_min_u32_dpp v{O+i}, v{T+2+i}, v24 row_ror:8 row_mask:0xf bank_mask:0xc")
            I(f"v_min_u32_dpp v{O+2+i}, v{T+i}, v24 row_ror:8 row_mask:0xf bank_mask:0x3")
        I(f"buffer_store_dwordx4 {vr(O)}, v31, {WS}, s{98+rho} offen sc1")
    TS(7)
    I(f"""s_lshl_b32 s10, s100, 3
s_add_u32 s10, s10, s3
s_lshl_b32 s10, s10, 14
s_lshl_b32 s9, s101, 8
s_add_u32 s10, s10, s9
s_lshl_b32 s9, s3, 12
s_barrier""")
    if o['glu']:
        I("s_cmp_ge_u32 s29, 22\ns_cbranch_scc1 L_Bq2\ns_cmp_lt_u32 s3, 4\ns_cbranch_scc1 L_Bq2\ns_cmp_lt_u32 s3, 6\ns_cbranch_scc1 L_Bq1")
        for n in range(8):
            I(f"s_mov_b32 m0, s20\ns_add_u32 s20, s20, 1024\nbuffer_load_dwordx4 v{26+n%2}, {SW}, s21 offen {nt1} lds\ns_add_u32 s21, s21, 4096")
        I("s_branch L_Bq2")
        L("L_Bq1")
        hgloads()
        L("L_Bq2")
    for n in range(4):
        I(f"s_mov_b32 m0, s9\ns_add_u32 s9, s9, 1024\nbuffer_load_dwordx4 v{26+n%2}, {SK}, s10 offen {nt1} lds\ns_add_u32 s10, s10, 4096")
    WOO, DNO, HO, OB, CO = 32, 48, 56, 64, 68
    if o['glu']:
        I("s_cmp_ge_u32 s29, 22\ns_cbranch_scc1 L_G2\ns_and_b32 s9, s3, 6\ns_cmp_eq_u32 s9, 4\ns_cbranch_scc0 L_G2")
        I("v_mov_b32 v16, 0\ns_mov_b32 s9, 0\ns_cmp_eq_u32 s15, 43\ns_cbranch_scc1 L_Gw\ns_waitcnt vmcnt(4)")
        L("L_GpollG")
        tagcheck(16, range(HGR, HGR + 16), "s43")
        I(f"v_and_b32 v16, 0xff, v16\nv_cmp_ne_u32 vcc, 0, v16\ns_cbranch_vccz L_GpollGd\ns_add_u32 s9, s9, 1\ns_cmp_gt_u32 s9, {SPIN}\ns_cbranch_scc1 L_GpollGd")
        hgloads()
        I("s_waitcnt vmcnt(0)\ns_branch L_GpollG")
        L("L_GpollGd")
        TS(3)
        if o['strip']:
            I("s_mov_b32 s9, 0xffffff00")
            for p in range(16): I(f"v_and_b32 v{HGR+p}, s9, v{HGR+p}")
        for b0 in (HGR, HGR + 8):
            I(f"v_add_f32 v{b0}, v{b0}, v{b0+1}\nv_add_f32 v{b0+2}, v{b0+2}, v{b0+3}\nv_add_f32 v{b0+4}, v{b0+4}, v{b0+5}\nv_add_f32 v{b0+6}, v{b0+6}, v{b0+7}\nv_add_f32 v{b0}, v{b0}, v{b0+2}\nv_add_f32 v{b0+4}, v{b0+4}, v{b0+6}\nv_add_f32 v{b0}, v{b0}, v{b0+4}")
        I(f"""v_cvt_pk_bf16_f32 v16, v{HGR}, v{HGR+8}
v_and_b32 v17, 0xffff0000, v16
v_lshlrev_b32 v16, 16, v16
v_mul_f32 v16, {f32(-math.log2(math.e))}, v16
v_exp_f32 v16, v16
v_add_f32 v16, 1.0, v16
v_rcp_f32 v16, v16
v_cvt_pk_bf16_f32 v16, v16, v16
v_lshlrev_b32 v16, 16, v16
v_mul_f32 v16, v16, v17
v_cvt_pk_bf16_f32 v16, v16, v16""")
        L("L_Gw")
        I("ds_write_b16 v241, v16")
        L("L_G2")
    I(f"""v_lshrrev_b32 v5, 2, v1
v_and_b32 v6, 7, v5
v_xor_b32 v6, s3, v6
v_lshlrev_b32 v6, 5, v6
v_lshl_add_u32 v6, v5, 8, v6
v_and_b32 v5, 3, v1
v_lshl_add_u32 v6, v5, 3, v6
v_bfe_u32 v7, v3, 2, 1
v_mul_u32_u24 v8, 192, v7
v_lshl_add_u32 v8, v2, 4, v8
v_add_u32 v8, {L_HB}, v8
v_mul_u32_u24 v9, 320, v7
v_lshl_add_u32 v9, v2, 4, v9
v_add_u32 v9, {L_CX}, v9
v_add_u32 v7, {L_QL}, v6
v_lshlrev_b32 v15, 16, v2
v_lshl_add_u32 v15, v3, 2, v15
s_lshl_b32 s14, s101, 2
s_lshr_b32 s9, s3, 1
s_add_u32 s14, s14, s9
s_lshl_b32 s14, s14, 12
s_lshl_b32 s9, s100, 7
s_add_u32 s14, s14, s9
s_and_b32 s9, s3, 1
s_lshl_b32 s9, s9, 6
s_add_u32 s14, s14, s9
s_add_u32 s14, s14, {O_H5:#x}
v_and_b32 v10, 255, v0
v_lshlrev_b32 v4, 2, v10
s_lshl_b32 s10, s100, 12
s_add_u32 s10, s10, {O_H4 if o['h1fast'] else O_H4+D_SLOW:#x}
v_lshrrev_b32 v5, 7, v10
v_mul_u32_u24 v5, 320, v5
v_and_b32 v11, 0x63, v10
v_lshl_add_u32 v5, v11, 1, v5
v_bfe_u32 v11, v10, 2, 2
v_lshl_add_u32 v5, v11, 4, v5
v_bfe_u32 v11, v10, 4, 1
v_lshl_add_u32 v5, v11, 3, v5
v_add_u32 v5, {L_CX}, v5
s_mov_b32 s13, 0xffffff00
v_mov_b32 v17, s43
s_mov_b32 s12, 0""")
    for r in range(4): I(f"v_mov_b32 v{OB+r}, 0")
    I("s_waitcnt vmcnt(0) lgkmcnt(0)")
    TS(2)
    I("s_barrier")
    def h4loads():
        for p in range(4): I(f"buffer_load_dword v{20+p}, v4, {WS}, s10 offen offset:{1024*p} sc1")
    I("s_cmp_ge_u32 s3, 4\ns_cbranch_scc1 L_O1")
    h4loads()
    L("L_O1")
    for ks in range(4):
        for t in range(2):
            I(f"ds_read_b64_tr_b16 v[{WOO+4*ks+2*t}:{WOO+4*ks+2*t+1}], v6 offset:{(32*ks+16*t)*256}")
    if o['glu']:
        I("s_cmp_ge_u32 s29, 22\ns_cbranch_scc1 L_O2")
        for ks in range(2):
            for t in range(2):
                I(f"ds_read_b64_tr_b16 v[{DNO+4*ks+2*t}:{DNO+4*ks+2*t+1}], v7 offset:{(32*ks+16*t)*256}")
            I(f"ds_read_b128 {vr(HO+4*ks)}, v8 offset:{64*ks}")
        I("s_waitcnt lgkmcnt(0)")
        for ks in range(2): mfma(OB, HO + 4 * ks, DNO + 4 * ks, False)
        L("L_O2")
    I("s_cmp_ge_u32 s3, 4\ns_cbranch_scc1 L_O3")
    L("L_Opoll")
    I("s_add_u32 s12, s12, 1")
    if o['h1fast']:
        I(f"s_cmp_eq_u32 s12, {o['fastn4']}\ns_cselect_b32 s9, {D_SLOW:#x}, 0\ns_add_u32 s10, s10, s9")
    I("s_waitcnt vmcnt(0)")
    tagcheck(16, range(20, 24), "s43")
    I(f"v_and_b32 v16, 0xff, v16\nv_cmp_ne_u32 vcc, 0, v16\ns_cbranch_vccz L_Opolld\ns_cmp_gt_u32 s12, {SPIN}\ns_cbranch_scc1 L_Opolld")
    h4loads()
    I("s_branch L_Opoll")
    L("L_Opolld")
    TS(8)
    if prof: I("s_mov_b32 s90, s12")
    if o['strip']:
        for p in range(4): I(f"v_and_b32 v{20+p}, s13, v{20+p}")
    I("v_add_f32 v20, v20, v21\nv_add_f32 v22, v22, v23\nv_add_f32 v20, v20, v22\nv_cvt_pk_bf16_f32 v20, v20, v20\nds_write_b16 v5, v20")
    L("L_O3")
    I("s_waitcnt lgkmcnt(0)\ns_barrier")
    for ks in range(4): I(f"ds_read_b128 {vr(CO+4*ks)}, v9 offset:{64*ks}")
    for ks in range(4):
        I(f"s_waitcnt lgkmcnt({3-ks})")
        mfma(OB, CO + 4 * ks, WOO + 4 * ks, False)
    exec_set(0xffffffff, 0)
    I(f"v_and_or_b32 v18, v{OB}, s13, v17\nbuffer_store_dword v18, v15, {WS}, s14 offen sc1")
    exec_all()
    TS(9)
    L("L_fin")
    if prof:
        I(f"s_waitcnt lgkmcnt(0)\ns_lshl_b32 s9, s2, 3\ns_add_u32 s9, s9, s3\ns_lshl_b32 s9, s9, 6\ns_add_u32 s9, s9, {O_TS:#x}\nv_mov_b32 v9, 0")
        exec_set(1, 0)
        for k in range(16):
            I(f"v_mov_b32 v8, s{64+2*k}\nbuffer_store_dword v8, v9, {WS}, s9 offen offset:{4*k}")
    L("L_end")
    I("s_endpgm")

    src = f"""; fused single-launch MLA(absorbed) decode attention + GLU, generated by gen/gen.py
; @launch grid=(256,1,1) block=(512,1,1) lds={LDS_BYTES}
.amdgcn_target "amdgcn-amd-amdhsa--gfx950"
.text
.globl {KNAME}
.p2align 8
.type {KNAME},@function
{KNAME}:
""" + A.text() + f""".section .rodata,"a"
.p2align 6
.amdhsa_kernel {KNAME}
  .amdhsa_next_free_vgpr 256
  .amdhsa_next_free_sgpr 102
  .amdhsa_accum_offset 256
  .amdhsa_group_segment_fixed_size 0
  .amdhsa_kernarg_size 104
  .amdhsa_user_sgpr_count 2
  .amdhsa_user_sgpr_kernarg_segment_ptr 1
  .amdhsa_system_sgpr_workgroup_id_x 1
.end_amdhsa_kernel
"""
    return src

if __name__ == "__main__":
    out = "parallel_sum__compressed_kv_cla__glu_gated_glu__decode.s"
    kw = {}
    for a in sys.argv[1:]:
        k, v = a.split("=", 1)
        if k == "o": out = v
        elif k.startswith("nt"): kw[k] = v
        else: kw[k] = int(v)
    open(out, "w").write(gen(**kw))
```
